```python
import torch

def _softmax(x, axis=-1):
    return torch.softmax(x, dim=axis)
def _gelu(x):
    return torch.nn.functional.gelu(x, approximate="tanh")
def _silu(x):
    return torch.nn.functional.silu(x)
def _sigmoid(x):
    return torch.sigmoid(x)
def _layernorm(x, axis=-1, eps=1e-5):
    m = x.mean(dim=axis, keepdim=True)
    v = x.var(dim=axis, keepdim=True, unbiased=False)
    return (x - m) / torch.sqrt(v + eps)
def _scatter_add(tgt, idx, src, axis=0):
    return tgt.clone().index_add_(axis, idx, src)
def _segment_sum(src, seg, n):
    out = torch.zeros((n,) + src.shape[1:], dtype=src.dtype)
    return out.index_add_(0, seg, src)
def _pad(x, pw):
    flat = tuple(v for pair in reversed(pw) for v in pair)
    return torch.nn.functional.pad(x, flat)

kernel_name = 'sequential_preLN__sliding_block_cached__geglu_ffn__decode'

def setup_inputs():

    _w = (lambda a: (lambda t: t.to(torch.bfloat16) if t.is_floating_point() else t)(torch.as_tensor(a)))
    def _A_setup():
        B, Sq, D = 1, 1, 576
        Hq, Hkv, Sk, Dh = 32, 16, 65536, 128
        assert Hq % Hkv == 0, (Hq, Hkv)
        return {
            "x": _w((lambda *s: torch.randn(*s, dtype=torch.bfloat16) * 0.05)(B, Sq, D)),
            "k_cache": _w((lambda *s: torch.randn(*s, dtype=torch.bfloat16) * 3.2)(B, Hkv, Sk, Dh)),
            "v_cache": _w((lambda *s: torch.randn(*s, dtype=torch.bfloat16) * 0.4)(B, Hkv, Sk, Dh)),
            "wq": _w((lambda *s: torch.randn(*s, dtype=torch.bfloat16) * 3.2)(D, Hq * Dh) * (D ** -0.5)),
            "wo": _w((lambda *s: torch.randn(*s, dtype=torch.bfloat16) * 0.4)(Hq * Dh, D) * ((Hq * Dh) ** -0.5)),
        }
    _A_in = _A_setup()

    def _B_setup():
        B, S, D, F = 1, 1, 576, 4608
        return {
            "x": _w((lambda *s: torch.randn(*s, dtype=torch.bfloat16) * 0.05)(B, S, D)),
            "w_gate": _w((lambda *s: torch.randn(*s, dtype=torch.bfloat16) * 0.05)(D, F)),
            "w_up": _w((lambda *s: torch.randn(*s, dtype=torch.bfloat16) * 0.05)(D, F)),
            "w_down": _w((lambda *s: torch.randn(*s, dtype=torch.bfloat16) * 0.05)(F, D)),
        }
    _B_in = _B_setup()

    return {
        "A_x": _A_in["x"],
        "A_k_cache": _A_in["k_cache"],
        "A_v_cache": _A_in["v_cache"],
        "A_wq": _A_in["wq"],
        "A_wo": _A_in["wo"],
        "B_x": _B_in["x"],
        "B_w_gate": _B_in["w_gate"],
        "B_w_up": _B_in["w_up"],
        "B_w_down": _B_in["w_down"],
    }

def reference(A_x, A_k_cache, A_v_cache, A_wq, A_wo, B_x, B_w_gate, B_w_up, B_w_down):
    def _A_ref(x, k_cache, v_cache, wq, wo):
        B, Sq, D = x.shape
        Hq, Dh = 32, 128
        Hkv, Sk = k_cache.shape[1], k_cache.shape[2]
        W = min(4096, max(256, Sk // 4))
        rep = Hq // Hkv
        q = (lambda x, *d: x.permute(*d))((x @ wq).reshape(B, Sq, Hq, Dh), 0, 2, 1, 3)
        k = (lambda x, n, axis: torch.repeat_interleave(x, n, dim=axis))(k_cache[:, :, Sk - W:, :], rep, axis=1)
        v = (lambda x, n, axis: torch.repeat_interleave(x, n, dim=axis))(v_cache[:, :, Sk - W:, :], rep, axis=1)
        scores = torch.einsum("bhqd,bhkd->bhqk", q, k) * (Dh ** -0.5)
        p = _softmax(scores, axis=-1)
        o = torch.einsum("bhqk,bhkd->bhqd", p, v)
        return (lambda x, *d: x.permute(*d))(o, 0, 2, 1, 3).reshape(B, Sq, Hq * Dh) @ wo

    def _B_ref(x, w_gate, w_up, w_down):
        return (_gelu(x @ w_gate) * (x @ w_up)) @ w_down

    x = A_x
    h = x + _A_ref(_layernorm(x, axis=-1), A_k_cache, A_v_cache, A_wq, A_wo)
    h2 = h + _B_ref(_layernorm(h, axis=-1), B_w_gate, B_w_up, B_w_down)
    return h2
```

```python
import re

TRANS = ("v_exp_f32", "v_log_f32", "v_rcp_f32", "v_rsq_f32", "v_sqrt_f32", "v_sin_f32", "v_cos_f32")

def regs_of(tok):
    tok = tok.strip()
    if tok.startswith("-"): tok = tok[1:]
    if tok.startswith("abs(") and tok.endswith(")"): tok = tok[4:-1]
    if tok.startswith("|") and tok.endswith("|"): tok = tok[1:-1]
    m = re.fullmatch(r"([vsa])(\d+)", tok)
    if m: return [(m.group(1), int(m.group(2)))]
    m = re.fullmatch(r"([vsa])\[(\d+):(\d+)\]", tok)
    if m: return [(m.group(1), i) for i in range(int(m.group(2)), int(m.group(3)) + 1)]
    if tok == "vcc": return [("s", "vcc")]
    if tok in ("vcc_lo", "vcc_hi"): return [("s", "vcc")]
    if tok == "exec": return [("s", "exec")]
    if tok == "m0": return [("s", "m0")]
    return []

class Ins:
    def __init__(self, text):
        self.text = text
        t = text.split(";")[0].strip()
        self.label = None
        self.mn = None
        if not t:
            self.kind = "none"; return
        if t.endswith(":"):
            self.kind = "label"; self.label = t[:-1]; return
        if t.startswith("."):
            self.kind = "none"; return
        parts = t.split(None, 1)
        mn = parts[0]; self.mn = mn
        rest = parts[1] if len(parts) > 1 else ""
        ops, depth, cur = [], 0, ""
        for ch in rest:
            if ch == "[": depth += 1
            if ch == "]": depth -= 1
            if ch == "," and depth == 0:
                ops.append(cur.strip()); cur = ""
            else: cur += ch
        if cur.strip(): ops.append(cur.strip())
        mods = ""
        if ops:
            last = ops[-1].split(None, 1)
            ops[-1] = last[0]
            mods = last[1] if len(last) > 1 else ""
        self.ops, self.mods = ops, mods
        self.reads, self.writes = set(), set()
        self.dpp = ("row_" in mods) or ("quad_perm" in mods) or mn.endswith("_dpp")
        self.lds_dma = False
        self.wide_store = False
        self.srcC = None; self.dst = None
        R = lambda i: set(regs_of(ops[i])) if i < len(ops) else set()
        base = re.sub(r"_(e32|e64|dpp|sdwa)$", "", mn)
        self.base = base
        if mn.startswith("v_mfma"):
            self.kind = "mfma"
            self.writes = R(0); self.reads = R(1) | R(2) | R(3)
            self.dst = ops[0]; self.srcC = ops[3]; self.ab = R(1) | R(2)
        elif mn.startswith("v_"):
            self.kind = "valu"
            if base.startswith("v_cmp"):
                self.writes = R(0); self.reads = R(1) | R(2)
            elif base in ("v_readlane_b32", "v_readfirstlane_b32"):
                self.writes = R(0); self.reads = R(1) | R(2)
            elif base.startswith("v_permlane") and "swap" in base:
                self.writes = R(0) | R(1); self.reads = R(0) | R(1)
            elif base in ("v_add_co_u32", "v_sub_co_u32", "v_subrev_co_u32"):
                self.writes = R(0) | R(1); self.reads = R(2) | R(3)
            elif base in ("v_addc_co_u32", "v_subb_co_u32"):
                self.writes = R(0) | R(1); self.reads = R(2) | R(3) | R(4)
            else:
                self.writes = R(0)
                self.reads = set()
                for i in range(1, len(ops)): self.reads |= R(i)
                if base in ("v_fmac_f32", "v_dot2c_f32_bf16", "v_writelane_b32"): self.reads |= R(0)
                if base == "v_cndmask_b32" and len(ops) == 3: self.reads.add(("s", "vcc"))
                if self.dpp: self.reads |= R(0)
            self.trans = base in TRANS
        elif mn.startswith(("buffer_", "global_")):
            self.kind = "vmem"
            allr = set()
            for i in range(len(ops)): allr |= R(i)
            self.lds_dma = (" lds" in (" " + mods)) or ("_lds_" in mn)
            if "_load" in mn and not self.lds_dma:
                self.writes = R(0); self.reads = allr - R(0)
                self.reads = set()
                for i in range(1, len(ops)): self.reads |= R(i)
            else:
                self.reads = allr
            if self.lds_dma: self.reads.add(("s", "m0"))
            if "_store" in mn and (mn.endswith("x4") or mn.endswith("x3")):
                self.wide_store = True
                self.data = R(0) if mn.startswith("buffer_") else R(1)
        elif mn.startswith("ds_"):
            self.kind = "ds"
            if mn.startswith(("ds_read", "ds_bpermute", "ds_permute", "ds_swizzle")):
                self.writes = R(0)
                for i in range(1, len(ops)): self.reads |= R(i)
            else:
                for i in range(len(ops)): self.reads |= R(i)
        elif mn.startswith(("s_load", "s_memrealtime", "s_memtime", "s_atomic")):
            self.kind = "smem"
            self.writes = R(0)
            for i in range(1, len(ops)): self.reads |= R(i)
        elif mn.startswith("s_"):
            self.kind = "salu"
            if mn in ("s_nop",):
                self.kind = "nop"; self.n = int(ops[0]) + 1
            elif mn.startswith(("s_cbranch", "s_branch")):
                self.kind = "branch"; self.target = ops[0]
            elif mn.startswith(("s_cmp", "s_waitcnt", "s_barrier", "s_endpgm", "s_setprio", "s_sleep")):
                for i in range(len(ops)): self.reads |= R(i)
            else:
                self.writes = R(0)
                for i in range(1, len(ops)): self.reads |= R(i)
                if "saveexec" in mn: self.writes.add(("s", "exec"))
        else:
            raise ValueError("unknown instruction: " + text)

def isv(r): return r[0] in ("v", "a")
def iss(r): return r[0] == "s"

def need(p, c):
    n = 0
    if p.kind == "valu":
        wv = {r for r in p.writes if isv(r)}; ws = {r for r in p.writes if iss(r)}
        if c.kind == "mfma" and wv & c.reads: n = max(n, 2)
        if c.kind == "valu":
            if c.dpp and wv & c.reads: n = max(n, 2)
            if c.base in ("v_readlane_b32", "v_readfirstlane_b32") and wv & c.reads: n = max(n, 1)
            if c.base.startswith("v_permlane") and wv & c.reads: n = max(n, 2)
            if ws & c.reads:
                n = max(n, 2)
                if c.base in ("v_readlane_b32", "v_writelane_b32") and len(c.ops) > 2 and ws & set(regs_of(c.ops[2])): n = max(n, 4)
            if p.trans and wv & c.reads: n = max(n, 1)
        if c.kind == "mfma" and p.trans and wv & c.reads: n = max(n, 2)
        if c.kind in ("vmem",) and ws & c.reads: n = max(n, 5)
        if c.kind in ("smem",) and ws & c.reads: n = max(n, 5)
        if c.kind in ("salu", "branch") and ws & getattr(c, "reads", set()): n = max(n, 1)
    if p.kind == "mfma":
        if c.kind == "mfma":
            if p.writes & c.ab: n = max(n, 8)
            elif p.writes & c.reads or p.writes & c.writes:
                n = max(n, 0 if (c.srcC == p.dst and c.dst == p.dst) else 6)
        elif c.kind in ("valu", "vmem", "ds"):
            if p.writes & (c.reads | c.writes): n = max(n, 8)
            if c.kind == "valu" and set(regs_of(p.srcC)) & c.writes: n = max(n, 3)
    if p.kind == "salu" and ("s", "m0") in p.writes and c.kind == "vmem" and c.lds_dma: n = max(n, 1)
    if p.kind == "vmem" and p.wide_store and c.kind in ("valu", "vmem", "ds", "mfma") and p.data & c.writes: n = max(n, 2)
    return n

def states(i):
    if i.kind in ("label", "none"): return 0
    if i.kind == "nop": return i.n
    return 1

W = 12
def fix(lines):
    ins = [Ins(l) for l in lines]
    changed = True
    nins = 0
    while changed:
        changed = False
        labels = {x.label: k for k, x in enumerate(ins) if x.kind == "label"}
        def succ_check(start, hist):
            return 0
        for k, c in enumerate(ins):
            if c.kind in ("label", "none", "nop"): continue
            d = 0; j = k - 1; short = 0
            while j >= 0 and d < W:
                p = ins[j]
                if p.mn in ("s_branch", "s_endpgm"): break
                if p.kind not in ("label", "none", "nop", "branch"):
                    r = need(p, c)
                    if r > d: short = max(short, r - d)
                d += states(p); j -= 1
            if short:
                ins.insert(k, Ins(f"    s_nop {short-1}")); nins += 1; changed = True; break
            if c.kind == "branch" and c.target in labels:
                t = labels[c.target]
                dd = 0; jj = t; worst = 0
                while jj < len(ins) and dd < W:
                    cc = ins[jj]
                    if cc.kind not in ("label", "none", "nop"):
                        d = 1 + dd; j = k - 1
                        while j >= 0 and d < W:
                            p = ins[j]
                            if p.mn in ("s_branch", "s_endpgm"): break
                            if p.kind not in ("label", "none", "nop", "branch"):
                                r = need(p, cc)
                                if r > d: worst = max(worst, r - d)
                            d += states(p); j -= 1
                    if cc.mn in ("s_branch", "s_endpgm"): break
                    dd += states(cc); jj += 1
                if worst:
                    ins.insert(k, Ins(f"    s_nop {worst-1}")); nins += 1; changed = True; break
    return [x.text for x in ins], nins

class Emit:
    def __init__(self): self.l = []
    def __call__(self, s):
        for line in s.split("\n"):
            line = line.rstrip()
            if not line.strip(): continue
            st = line.strip()
            if st.endswith(":") or st.startswith(";"): self.l.append(st)
            else: self.l.append("    " + st)
    def text(self):
        out, n = fix(self.l)
        return "\n".join(out) + "\n", n
```

```python
import sys, os
sys.path.insert(0, os.path.dirname(os.path.abspath(__file__)))
from emit import Emit

NAME = "sequential_preLN__sliding_block_cached__geglu_ffn__decode_kernel"

WS_E  = 0x0
WS_QP = 0x1000
WS_OP = 0x22000
WS_ST = 0x62000
WS_HP = 0x64000
WS_DP = 0x6C000
WS_DIAG = 0xC0000
WS_SIZE = 0x100000
LK  = 0
LXD = 65536
LQR = 68096
LQB = 77312
LMX = 77824
LLS = 77952
LPT = 78080
LHT = 80128
LOT = 82688
LAT = 86784
LRR = 88064
LDS_BYTES = 98304

LOG2E = 0x3fb8aa3b
SCALE = 0x3db504f3
INV576 = 0x3ae38e39
EPS = 0x3727c5ac

def gen(diag=False, spin=200000, gu_flags=("nt", "nt"), prepoll=True):
    e = Emit()
    stamp_n = [0]
    def stamp(i):
        if diag: e(f"s_memrealtime s[{64+2*i}:{65+2*i}]")
    def srd(d, lo, nrec):
        e(f"s_mov_b32 s{d}, s{lo}\ns_mov_b32 s{d+1}, s{lo+1}\ns_mov_b32 s{d+2}, {nrec}\ns_mov_b32 s{d+3}, 0x20000")
    def allreduce(op, v, t, row=True, cross=True, parity=False):
        if row:
            if not parity: e(f"{op}_dpp v{v}, v{v}, v{v} quad_perm:[1,0,3,2] row_mask:0xf bank_mask:0xf")
            e(f"{op}_dpp v{v}, v{v}, v{v} quad_perm:[2,3,0,1] row_mask:0xf bank_mask:0xf")
            e(f"{op}_dpp v{v}, v{v}, v{v} row_ror:4 row_mask:0xf bank_mask:0xf")
            e(f"{op}_dpp v{v}, v{v}, v{v} row_ror:8 row_mask:0xf bank_mask:0xf")
        if cross:
            e(f"v_mov_b32 v{t}, v{v}\nv_permlane16_swap_b32 v{t}, v{v}\n{op} v{v}, v{v}, v{t}")
            e(f"v_mov_b32 v{t}, v{v}\nv_permlane32_swap_b32 v{t}, v{v}\n{op} v{v}, v{v}, v{t}")
    def rne(dst, src, t=None):
        e(f"v_cvt_pk_bf16_f32 v{dst}, v{src}, v{src}\nv_lshlrev_b32 v{dst}, 16, v{dst}")
    def ln_tail(vmean, vvar, vm, vr, t):
        rne(vm, vmean)
        rne(t, vvar)
        e(f"v_add_f32 v{t}, {EPS:#x}, v{t}")
        rne(t, t)
        e(f"v_sqrt_f32 v{t}, v{t}")
        rne(t, t)
        e(f"v_rcp_f32 v{vr}, v{t}")
    def half_reduce(d0, t0):
        for r in range(4): e(f"v_mov_b32_dpp v{t0+r}, v{d0+r} row_ror:8 row_mask:0xf bank_mask:0xf")
        for r in range(4): e(f"v_permlane32_swap_b32 v{t0+r}, v{t0+4+r}")
        for r in range(4): e(f"v_add_f32 v{d0+r}, v{d0+r}, v{t0+4+r}")
    def amask(a0, x):
        for k in range(4): e(f"v_and_b32 v{a0+k}, v{x}, v{4+k}")
    def spin_guard(lbl_retry, sreg, vcc_fail=True):
        e(f"s_sub_u32 s{sreg}, s{sreg}, 1\ns_cbranch_scc1 {lbl_retry}_out\ns_cbranch_vccnz {lbl_retry}\n{lbl_retry}_out:")

    e(f"""
s_cmp_ge_u32 s2, 256
s_cbranch_scc1 L_END""")
    stamp(0)
    e(f"""
s_load_dwordx16 s[16:31], s[0:1], 0
s_load_dwordx8 s[32:39], s[0:1], 64
v_lshrrev_b32 v1, 6, v0
v_and_b32 v0, 63, v0
v_readfirstlane_b32 s3, v1
s_and_b32 s4, s2, 15
s_lshr_b32 s5, s2, 4
s_lshr_b32 s6, s5, 2
s_and_b32 s7, s5, 3
v_lshrrev_b32 v8, 3, v0
v_and_b32 v9, 7, v0
v_lshlrev_b32 v9, 4, v9
v_lshlrev_b32 v11, 4, v0
v_lshl_add_u32 v10, v8, 13, v9
s_mul_i32 s56, s6, {144*8192}
s_lshl_b32 s57, s4, 9
s_add_u32 s56, s56, s57
s_lshl_b32 s57, s7, 7
s_add_u32 s56, s56, s57
s_lshl_b32 s57, s3, 17
s_add_u32 s56, s56, s57
s_add_u32 s57, s56, 65536
s_lshl_b32 s58, s4, 24
s_lshl_b32 s59, s5, 16
s_add_u32 s58, s58, s59
s_add_u32 s58, s58, {61440*256}
s_cmp_eq_u32 s3, 8
s_waitcnt lgkmcnt(0)
s_load_dword s45, s[38:39], 0
s_cbranch_scc1 L_W8""")
    srd(8, 22, 576*8192)
    e(f"""
buffer_load_dwordx4 v[12:15], v10, s[8:11], s56 offen nt
buffer_load_dwordx4 v[16:19], v10, s[8:11], s57 offen nt
s_add_u32 s12, s18, s58
s_addc_u32 s13, s19, 0
s_mov_b32 s14, 65536
s_mov_b32 s15, 0x20000
v_lshrrev_b32 v1, 4, v0
v_and_b32 v2, 15, v0
v_xor_b32 v2, v2, v1
v_lshlrev_b32 v1, 8, v1
v_lshl_add_u32 v28, v2, 4, v1""")
    for t in range(1, 4):
        e(f"v_xor_b32 v3, {4*t}, v2\nv_lshl_add_u32 v{28+t}, v3, 4, v1")
    e(f"s_lshl_b32 s59, s3, 13\ns_mov_b32 m0, s59")
    def kdma(t):
        e(f"buffer_load_dwordx4 v{28+(t%4)}, s[12:15], s59 offen nt lds")
        e(f"s_add_u32 m0, m0, 1024\ns_add_u32 s59, s59, 1024")
    kdma(0); kdma(1)
    def masks():
        e(f"""
v_and_b32 v1, 1, v0
v_lshlrev_b32 v1, 4, v1
v_mov_b32 v2, 0xffff
v_lshlrev_b32 v2, v1, v2
v_bfe_u32 v3, v0, 1, 2""")
        for k in range(4): e(f"v_cmp_eq_u32 vcc, {k}, v3\nv_cndmask_b32 v{4+k}, 0, v2, vcc")
    masks()
    def qmfma(nafter):
        stamp(15)
        e(f"""
s_mul_i32 s60, s6, {144*4}
s_lshl_b32 s61, s3, 6
s_add_u32 s60, s60, s61
s_add_u32 s60, s60, {LXD}
v_lshl_add_u32 v62, v8, 2, s60
s_lshl_b32 s61, s3, 10
s_add_u32 s61, s61, {LQR}
v_add_u32 v63, s61, v11
s_barrier
@@S13@@
ds_read_b32 v60, v62
ds_read_b32 v61, v62 offset:32
s_waitcnt lgkmcnt(1)""".replace("@@S13@@", "s_memrealtime s[90:91]" if diag else ""))
        amask(64, 60)
        e(f"s_waitcnt vmcnt({nafter+1}) lgkmcnt(0)")
        stamp(14)
        e("v_mfma_f32_16x16x32_bf16 v[68:71], v[64:67], v[12:15], 0")
        amask(72, 61)
        e(f"s_waitcnt vmcnt({nafter})")
        e("v_mfma_f32_16x16x32_bf16 v[68:71], v[72:75], v[16:19], v[68:71]")
        e("ds_write_b128 v63, v[68:71]\ns_waitcnt lgkmcnt(0)\ns_barrier")
    qmfma(2)
    stamp(1)
    e("s_barrier")
    for t in range(2, 8): kdma(t)
    e(f"""
s_add_u32 s8, s20, s58
s_addc_u32 s9, s21, 0
s_mov_b32 s10, 65536
s_lshl_b32 s59, s3, 13""")
    for n in range(8):
        e(f"buffer_load_dwordx4 v[{32+4*n}:{35+4*n}], v11, s[8:11], s59 offen nt\ns_add_u32 s59, s59, 1024")
    stamp(2)
    e(f"""
v_and_b32 v1, 15, v0            ; i / j
v_lshrrev_b32 v2, 4, v0         ; g / q4
v_xor_b32 v3, v1, v2            ; (g ^ i)
s_lshl_b32 s59, s3, 13
v_lshl_add_u32 v64, v1, 8, s59
""")
    for cc in range(4):
        e(f"v_xor_b32 v65, {4*cc}, v3\nv_lshl_add_u32 v{66+cc}, v65, 4, v64")
    e(f"""
v_and_b32 v65, 1, v1
v_lshlrev_b32 v65, 8, v65
v_lshl_add_u32 v65, v2, 4, v65
v_add_u32 v70, {LQB}, v65
v_and_b32 v65, 2, v1
v_cmp_ne_u32 s[46:47], 0, v65
v_and_b32 v65, 4, v1
v_cmp_ne_u32 s[48:49], 0, v65
v_and_b32 v65, 8, v1
v_cmp_ne_u32 s[50:51], 0, v65
v_and_b32 v65, 1, v1
v_lshlrev_b32 v71, 5, v65
v_add_u32 v71, {LMX}, v71
v_bfe_u32 v72, v1, 1, 2
v_lshl_add_u32 v72, v65, 2, v72
v_lshlrev_b32 v72, 3, v72
v_lshrrev_b32 v73, 3, v1
v_lshl_add_u32 v73, v73, 2, v2
v_add_u32 v72, v72, v73
s_lshl_b32 s59, s3, 8
s_add_u32 s59, s59, {LPT}
v_lshl_add_u32 v72, v72, 2, s59
v_lshrrev_b32 v73, 3, v1
v_lshl_add_u32 v73, v73, 2, v2
v_lshl_add_u32 v73, v73, 5, s59
s_barrier                       ; B2 (V issued)
s_barrier                       ; B3 (q ready)
""")
    for cc in range(4): e(f"ds_read_b128 v[{76+4*cc}:{79+4*cc}], v70 offset:{64*cc}")
    e("s_waitcnt vmcnt(8)")
    stamp(3)
    for T in range(2):
        for cc in range(4):
            e(f"ds_read_b128 v[{92+16*T+4*cc}:{95+16*T+4*cc}], v{66+cc} offset:{4096*T}")
    for T in range(2):
        for cc in range(4):
            e(f"s_waitcnt lgkmcnt({7-(4*T+cc)})")
            c = "0" if cc == 0 else f"v[{124+4*T}:{127+4*T}]"
            e(f"v_mfma_f32_16x16x32_bf16 v[{124+4*T}:{127+4*T}], v[{92+16*T+4*cc}:{95+16*T+4*cc}], v[{76+4*cc}:{79+4*cc}], {c}")
    e(f"""
v_cndmask_b32 v92, v124, v125, s[46:47]
v_cndmask_b32 v93, v126, v127, s[46:47]
v_cndmask_b32 v94, v128, v129, s[46:47]
v_cndmask_b32 v95, v130, v131, s[46:47]
v_cndmask_b32 v92, v92, v93, s[48:49]
v_cndmask_b32 v94, v94, v95, s[48:49]
v_cndmask_b32 v92, v92, v94, s[50:51]""")
    rne(92, 92)
    e(f"v_mul_f32 v92, {SCALE:#x}, v92")
    rne(92, 92)
    e("v_mov_b32 v93, v92")
    allreduce("v_max_f32", 93, 94, parity=True)
    e(f"""
s_lshl_b32 s59, s3, 2
v_add_u32 v94, s59, v71
ds_write_b32 v94, v93
s_waitcnt lgkmcnt(0)
s_barrier                       ; B4
ds_read_b128 v[96:99], v71
ds_read_b128 v[100:103], v71 offset:16
s_waitcnt lgkmcnt(0)
v_max3_f32 v96, v96, v97, v98
v_max3_f32 v99, v99, v100, v101
v_max3_f32 v96, v96, v102, v103
v_max_f32 v96, v96, v99
v_sub_f32 v92, v92, v96
v_mul_f32 v92, {LOG2E:#x}, v92
v_exp_f32 v92, v92
v_cvt_pk_bf16_f32 v93, v92, v92
ds_write_b32 v72, v93""")
    allreduce("v_add_f32", 92, 94, parity=True)
    e(f"""
ds_write_b32 v94, v92
""".replace("v94", "v95") if False else "")
    e(f"""
s_lshl_b32 s59, s3, 2
v_add_u32 v95, s59, v71
ds_write_b32 v95, v92 offset:{LLS-LMX}
s_waitcnt lgkmcnt(0)
ds_read_b128 v[96:99], v73
ds_read_b128 v[100:103], v73 offset:16
s_lshl_b32 s59, s3, 10
s_add_u32 s59, s59, {LQR}
v_add_u32 v74, s59, v11
s_waitcnt lgkmcnt(0)""")
    stamp(4)
    for n in range(8):
        amask(104 + 4*(n % 2), 96 + n)
        e(f"s_waitcnt vmcnt({7-n})")
        c = "0" if n == 0 else "v[112:115]"
        e(f"v_mfma_f32_16x16x32_bf16 v[112:115], v[{104+4*(n%2)}:{107+4*(n%2)}], v[{32+4*n}:{35+4*n}], {c}")
    stamp(5)
    e(f"""
ds_write_b128 v74, v[112:115]
s_waitcnt lgkmcnt(0)
s_barrier                       ; B5
s_barrier                       ; B6
s_branch L_ROLE""")

    e("L_W8:")
    srd(12, 16, 1152)
    e(f"""
buffer_load_dwordx4 v[20:23], v11, s[12:15], 0 offen
buffer_load_dwordx4 v[24:27], v11, s[12:15], 0 offen offset:1024""")
    srd(8, 22, 576*8192)
    e(f"""
buffer_load_dwordx4 v[12:15], v10, s[8:11], s56 offen nt
buffer_load_dwordx4 v[16:19], v10, s[8:11], s57 offen nt""")
    masks()
    stamp(10)
    e("s_waitcnt vmcnt(2)")
    stamp(11)
    for i in range(8):
        e(f"v_lshlrev_b32 v{32+2*i}, 16, v{20+i}\nv_and_b32 v{33+2*i}, 0xffff0000, v{20+i}")
    e("v_pk_add_f32 v[48:49], v[32:33], v[34:35]")
    for i in range(2, 8): e(f"v_pk_add_f32 v[48:49], v[48:49], v[{32+2*i}:{33+2*i}]")
    e("v_add_f32 v48, v48, v49")
    allreduce("v_add_f32", 48, 49)
    e(f"v_mul_f32 v48, {INV576:#x}, v48     ; mean")
    e("v_cmp_gt_u32 vcc, 8, v0")
    e("v_mov_b32 v50, 0")
    for i in range(16):
        e(f"v_sub_f32 v51, v{32+i}, v48")
        if i >= 8: e("v_cndmask_b32 v51, 0, v51, vcc")
        e("v_fmac_f32 v50, v51, v51")
    allreduce("v_add_f32", 50, 49)
    e(f"v_mul_f32 v50, {INV576:#x}, v50     ; var")
    ln_tail(48, 50, 52, 53, 49)
    e("s_mov_b32 s60, 0x01000100\ns_mov_b32 s61, 0x03020302")
    for i in range(8):
        e(f"""v_sub_f32 v{32+2*i}, v{32+2*i}, v52
v_sub_f32 v{33+2*i}, v{33+2*i}, v52
v_cvt_pk_bf16_f32 v54, v{32+2*i}, v{33+2*i}
v_lshlrev_b32 v55, 16, v54
v_and_b32 v56, 0xffff0000, v54
v_mul_f32 v55, v55, v53
v_mul_f32 v56, v56, v53
v_cvt_pk_bf16_f32 v54, v55, v56
v_perm_b32 v{32+2*i}, v54, v54, s60
v_perm_b32 v{33+2*i}, v54, v54, s61""")
    e(f"""
v_lshlrev_b32 v54, 5, v0
v_add_u32 v54, {LXD}, v54
ds_write_b128 v54, v[32:35]
ds_write_b128 v54, v[36:39] offset:16
s_mov_b64 exec, 0xff
ds_write_b128 v54, v[40:43] offset:2048
ds_write_b128 v54, v[44:47] offset:2064
s_mov_b64 exec, -1
s_waitcnt lgkmcnt(0)""")
    stamp(12)
    qmfma(0)
    stamp(1)
    e(f"v_add_u32 v63, {LQR}, v11")
    for w in range(9): e(f"ds_read_b128 v[{80+4*w}:{83+4*w}], v63 offset:{1024*w}")
    e(f"""
s_waitcnt lgkmcnt(0)
; tag
s_mul_i32 s44, s45, 0x9E3779B1
s_add_u32 s44, s44, 0x85EBCA6B""")
    for w in range(1, 9):
        e(f"v_pk_add_f32 v[80:81], v[80:81], v[{80+4*w}:{81+4*w}]\nv_pk_add_f32 v[82:83], v[82:83], v[{82+4*w}:{83+4*w}]")
    half_reduce(80, 84)
    e(f"""
v_mov_b32_dpp v84, v82 row_ror:8 row_mask:0xf bank_mask:0xf
v_mov_b32_dpp v85, v83 row_ror:8 row_mask:0xf bank_mask:0xf
v_and_b32 v1, 15, v0
v_cmp_lt_u32 vcc, 7, v1
v_cndmask_b32 v88, v80, v84, vcc
v_cndmask_b32 v90, v81, v85, vcc
v_mov_b32 v89, s44
v_mov_b32 v91, s44
v_and_b32 v2, 7, v1
v_lshlrev_b32 v2, 6, v2
v_lshrrev_b32 v3, 4, v0
v_lshl_add_u32 v2, v3, 5, v2
v_lshrrev_b32 v3, 3, v1
v_lshl_add_u32 v2, v3, 4, v2
s_lshl_b32 s56, s4, 13
s_lshl_b32 s57, s6, 11
s_add_u32 s56, s56, s57
s_lshl_b32 s57, s7, 9
s_add_u32 s56, s56, s57
s_add_u32 s56, s56, {WS_QP}""")
    srd(40, 38, WS_SIZE)
    e(f"""
s_mov_b32 exec_lo, -1
s_mov_b32 exec_hi, 0
buffer_store_dwordx4 v[88:91], v2, s[40:43], s56 offen sc1
s_mov_b64 exec, -1
s_barrier                       ; B1b""")
    stamp(2)
    e(f"""
s_lshl_b32 s56, s4, 13
s_add_u32 s56, s56, {WS_QP}
s_mov_b32 s62, {spin}""")
    if prepoll:
        e(f"""
s_add_u32 s12, s38, s56
s_addc_u32 s13, s39, 0
L_QPP:""")
        for half in range(2):
            for i in range(8):
                e(f"s_load_dword s{96+0 if False else 46+i}, s[12:13], {(half*8+i)*512+508} glc")
            e("s_waitcnt lgkmcnt(0)")
            if half == 0: e("s_xor_b32 s63, s46, s44")
            else: e("s_xor_b32 s54, s46, s44\ns_or_b32 s63, s63, s54")
            for i in range(1, 8): e(f"s_xor_b32 s54, s{46+i}, s44\ns_or_b32 s63, s63, s54")
        e(f"""
s_sub_u32 s62, s62, 1
s_cbranch_scc1 L_QPP_out
s_cmp_lg_u32 s63, 0
s_cbranch_scc1 L_QPP
L_QPP_out:""")
    e("L_QG:")
    for kp in range(4):
        for hd in range(2):
            i = kp*2 + hd
            off = kp*2048 + hd*1024
            e(f"s_add_u32 s57, s56, {off}\nbuffer_load_dwordx4 v[{80+4*i}:{83+4*i}], v11, s[40:43], s57 offen sc1")
    e("s_waitcnt vmcnt(0)")
    e("v_xor_b32 v112, s44, v81\nv_xor_b32 v113, s44, v83\nv_or_b32 v112, v112, v113")
    for i in range(1, 8):
        e(f"v_xor_b32 v113, s44, v{81+4*i}\nv_xor_b32 v114, s44, v{83+4*i}\nv_or3_b32 v112, v112, v113, v114")
    e("v_cmp_ne_u32 vcc, 0, v112")
    spin_guard("L_QG", 62)
    stamp(3)
    for hd in range(2):
        a = 80 + 4*hd
        for kp in range(1, 4):
            b = 80 + 4*(kp*2+hd)
            e(f"v_add_f32 v{a}, v{a}, v{b}\nv_add_f32 v{a+2}, v{a+2}, v{b+2}")
        e(f"v_cvt_pk_bf16_f32 v{a}, v{a}, v{a+2}")
    e(f"""
v_lshlrev_b32 v1, 2, v0
v_add_u32 v1, {LQB}, v1
ds_write_b32 v1, v80
ds_write_b32 v1, v84 offset:256
s_waitcnt lgkmcnt(0)
s_barrier                       ; B2
s_barrier                       ; B3
s_barrier                       ; B4
v_and_b32 v1, 15, v0
v_lshrrev_b32 v2, 4, v0
v_lshlrev_b32 v3, 5, v1
v_and_b32 v60, 1, v2
v_lshl_add_u32 v3, v60, 4, v3
v_lshrrev_b32 v60, 1, v2
v_lshl_add_u32 v60, v60, 13, v3      ; voffset
s_lshl_b32 s56, s4, 14
s_lshl_b32 s57, s5, 9
s_add_u32 s56, s56, s57
s_add_u32 s56, s56, {WS_OP}
v_lshlrev_b32 v61, 8, v0
s_lshl_b32 s57, s4, 9
s_lshl_b32 s58, s5, 4
s_add_u32 s57, s57, s58
s_add_u32 s57, s57, {WS_ST}
v_lshlrev_b32 v62, 5, v0
v_add_u32 v62, {LMX}, v62
v_add_u32 v63, {LQR}, v11
s_barrier                       ; B5""")
    for w in range(8): e(f"ds_read_b128 v[{80+4*w}:{83+4*w}], v63 offset:{1024*w}")
    e(f"""
s_mov_b64 exec, 3
ds_read_b128 v[112:115], v62
ds_read_b128 v[116:119], v62 offset:16
ds_read_b128 v[120:123], v62 offset:{LLS-LMX}
ds_read_b128 v[124:127], v62 offset:{LLS-LMX+16}
s_mov_b64 exec, -1
s_waitcnt lgkmcnt(4)""")
    for w in range(1, 8):
        e(f"v_pk_add_f32 v[80:81], v[80:81], v[{80+4*w}:{81+4*w}]\nv_pk_add_f32 v[82:83], v[82:83], v[{82+4*w}:{83+4*w}]")
    e(f"""
v_cvt_pk_bf16_f32 v84, v80, v81
v_cvt_pk_bf16_f32 v86, v82, v83
v_mov_b32 v85, s44
v_mov_b32 v87, s44
buffer_store_dwordx4 v[84:87], v60, s[40:43], s56 offen sc1
s_waitcnt lgkmcnt(0)
v_max3_f32 v112, v112, v113, v114
v_max3_f32 v115, v115, v116, v117
v_max3_f32 v112, v112, v118, v119
v_max_f32 v112, v112, v115
v_pk_add_f32 v[120:121], v[120:121], v[122:123]
v_pk_add_f32 v[124:125], v[124:125], v[126:127]
v_pk_add_f32 v[120:121], v[120:121], v[124:125]
v_add_f32 v114, v120, v121
v_mov_b32 v113, s44
v_mov_b32 v115, s44
s_mov_b64 exec, 3
buffer_store_dwordx4 v[112:115], v61, s[40:43], s57 offen sc1
s_mov_b64 exec, -1
s_barrier                       ; B6""")
    stamp(5)

    e(f"""
L_ROLE:
s_mul_i32 s44, s45, 0x9E3779B1
s_add_u32 s44, s44, 0x85EBCA6B""")
    srd(40, 38, WS_SIZE)
    e(f"""
s_mov_b32 s62, {spin}
s_cmp_lt_u32 s5, 9
s_cbranch_scc1 L_Y
s_sub_u32 s6, s5, 9
s_lshl_b32 s6, s6, 4
s_add_u32 s6, s6, s4          ; x index 0..111
s_cmp_lt_u32 s6, 99
s_cbranch_scc1 L_X
s_branch L_RED""")

    e(f"""
L_X:
s_mul_hi_u32 s7, s6, {(2**32+8)//9}     ; rg = x/9
s_mul_i32 s56, s7, 9
s_sub_u32 s5, s6, s56                   ; cg
s_cmp_eq_u32 s3, 8
s_cbranch_scc1 L_X_SYNC1""")
    srd(8, 24, 4096*1152)
    e(f"""
v_mul_u32_u24 v10, 1152, v8
v_add_u32 v10, v10, v9
s_mul_i32 s56, s7, {384*1152}
s_mul_i32 s57, s3, {48*1152}
s_add_u32 s56, s56, s57
s_lshl_b32 s57, s5, 7
s_add_u32 s56, s56, s57""")
    for t in range(6):
        e(f"buffer_load_dwordx4 v[{32+4*t}:{35+4*t}], v10, s[8:11], s56 offen nt\ns_add_u32 s56, s56, {8*1152}")
    e(f"""
s_lshl_b32 s56, s3, 8
s_add_u32 s56, s56, {LOT}
v_lshl_add_u32 v62, v8, 5, s56
s_lshl_b32 s56, s3, 8
s_add_u32 s56, s56, {LRR}
v_and_b32 v1, 15, v0
v_lshrrev_b32 v2, 4, v0
v_lshlrev_b32 v63, 5, v1
v_lshl_add_u32 v63, v2, 4, v63
v_add_u32 v63, s56, v63
s_cmp_ge_u32 s3, 6
s_cbranch_scc1 L_X_SYNC1
s_lshr_b32 s56, s3, 1
s_and_b32 s57, s3, 1
s_mul_i32 s58, s7, 3
s_add_u32 s58, s58, s56                 ; q head
v_and_b32 v1, 31, v0
v_lshlrev_b32 v1, 2, v1
v_lshrrev_b32 v2, 5, v0
v_lshl_add_u32 v1, v2, 1, v1
s_lshl_b32 s59, s56, 7
v_add_u32 v1, s59, v1                   ; r0 (0..383)
v_mul_u32_u24 v2, 1366, v1
v_lshrrev_b32 v2, 16, v2                ; r0/48
v_mul_u32_u24 v3, 48, v2
v_sub_u32 v3, v1, v3                    ; rem
v_lshrrev_b32 v60, 3, v3                ; tau
v_and_b32 v3, 7, v3
v_lshlrev_b32 v2, 6, v2
v_lshl_add_u32 v2, v3, 3, v2
v_add_u32 v2, v2, v60
s_lshl_b32 s59, s57, 11
s_add_u32 s59, s59, {LOT}
v_lshl_add_u32 v60, v2, 2, s59
s_cmp_ge_u32 s58, 32
s_cbranch_scc1 L_X_ZERO
s_lshl_b32 s59, s58, 13
s_lshl_b32 s60, s57, 12
s_add_u32 s59, s59, s60
s_add_u32 s59, s59, {WS_OP}             ; + k*1024
s_lshl_b32 s60, s58, 8
s_add_u32 s60, s60, {WS_ST}
v_and_b32 v1, 15, v0
v_lshlrev_b32 v61, 4, v1
v_lshrrev_b32 v1, 5, v0
s_lshl_b32 s61, s57, 3
v_add_u32 v1, s61, v1
v_lshlrev_b32 v56, 2, v1
L_XG:
buffer_load_dwordx4 v[64:67], v61, s[40:43], s60 offen sc1""")
    for k in range(4):
        e(f"s_add_u32 s61, s59, {1024*k}\nbuffer_load_dwordx4 v[{68+4*k}:{71+4*k}], v11, s[40:43], s61 offen sc1")
    e(f"""
s_waitcnt vmcnt(0)
v_xor_b32 v84, s44, v65
v_xor_b32 v85, s44, v67
v_or_b32 v84, v84, v85""")
    for k in range(4):
        e(f"v_xor_b32 v85, s44, v{69+4*k}\nv_xor_b32 v86, s44, v{71+4*k}\nv_or3_b32 v84, v84, v85, v86")
    e("v_cmp_ne_u32 vcc, 0, v84")
    spin_guard("L_XG", 62)
    stamp(6)
    e("v_mov_b32 v84, v64")
    allreduce("v_max_f32", 84, 85, cross=False)
    e(f"""
v_sub_f32 v84, v64, v84
v_mul_f32 v84, {LOG2E:#x}, v84
v_exp_f32 v84, v84
v_mul_f32 v85, v84, v66""")
    allreduce("v_add_f32", 85, 86, cross=False)
    e(f"""
v_rcp_f32 v85, v85
v_mul_f32 v84, v84, v85                 ; w_c / L
""")
    for k in range(4):
        e(f"v_add_u32 v86, {8*k}, v56\nds_bpermute_b32 v{88+k}, v86, v84")
    e("v_mov_b32 v92, 0\nv_mov_b32 v93, 0\nv_mov_b32 v94, 0\nv_mov_b32 v95, 0")
    for k in range(4):
        b = 68 + 4*k
        e(f"""s_waitcnt lgkmcnt({3-k})
v_lshlrev_b32 v96, 16, v{b}
v_and_b32 v97, 0xffff0000, v{b}
v_lshlrev_b32 v98, 16, v{b+2}
v_and_b32 v99, 0xffff0000, v{b+2}
v_fmac_f32 v92, v96, v{88+k}
v_fmac_f32 v93, v97, v{88+k}
v_fmac_f32 v94, v98, v{88+k}
v_fmac_f32 v95, v99, v{88+k}""")
    e(f"""
v_permlane32_swap_b32 v92, v94
v_permlane32_swap_b32 v93, v95
v_add_f32 v92, v92, v94
v_add_f32 v93, v93, v95
s_branch L_X_WR
L_X_ZERO:
v_mov_b32 v92, 0
v_mov_b32 v93, 0
L_X_WR:
ds_write_b32 v60, v92
ds_write_b32 v60, v93 offset:32
s_waitcnt lgkmcnt(0)
L_X_SYNC1:
s_barrier                               ; BX1
s_cmp_eq_u32 s3, 8
s_cbranch_scc1 L_X_SYNC2
ds_read_b128 v[64:67], v62
ds_read_b64 v[68:69], v62 offset:16
ds_read_b128 v[72:75], v62 offset:2048
ds_read_b64 v[76:77], v62 offset:2064
s_mov_b32 s60, 0x01000100
s_waitcnt lgkmcnt(0)
v_pk_add_f32 v[64:65], v[64:65], v[72:73]
v_pk_add_f32 v[66:67], v[66:67], v[74:75]
v_pk_add_f32 v[68:69], v[68:69], v[76:77]""")
    for t in range(6):
        e(f"v_cvt_pk_bf16_f32 v{64+t}, v{64+t}, v{64+t}")
    for t in range(6):
        amask(72 + 4*(t % 2), 64 + t)
        e(f"s_waitcnt vmcnt({5-t})")
        c = "0" if t == 0 else "v[80:83]"
        e(f"v_mfma_f32_16x16x32_bf16 v[80:83], v[{72+4*(t%2)}:{75+4*(t%2)}], v[{32+4*t}:{35+4*t}], {c}")
    half_reduce(80, 84)
    e(f"""
s_mov_b32 s56, 0x00ff00ff
s_mov_b32 s57, 0
s_mov_b64 exec, s[56:57]
ds_write_b128 v63, v[80:83]
s_mov_b64 exec, -1
s_waitcnt lgkmcnt(0)
L_X_SYNC2:
s_barrier                               ; BX2
s_cmp_eq_u32 s3, 8
s_cbranch_scc0 L_X_DONE
v_and_b32 v1, 15, v0
v_lshrrev_b32 v2, 4, v0
v_lshlrev_b32 v63, 5, v1
v_lshl_add_u32 v63, v2, 4, v63          ; (8j+4q)*4
v_add_u32 v62, {LRR}, v63
s_mov_b32 s56, 0x00ff00ff
s_mov_b32 s57, 0
s_mov_b64 exec, s[56:57]""")
    for w in range(8): e(f"ds_read_b128 v[{80+4*w}:{83+4*w}], v62 offset:{256*w}")
    e(f"""
s_mul_i32 s56, s7, 2304
s_lshl_b32 s57, s5, 8
s_add_u32 s56, s56, s57
s_add_u32 s56, s56, {WS_HP}
s_waitcnt lgkmcnt(0)""")
    for w in range(1, 8):
        e(f"v_pk_add_f32 v[80:81], v[80:81], v[{80+4*w}:{81+4*w}]\nv_pk_add_f32 v[82:83], v[82:83], v[{82+4*w}:{83+4*w}]")
    e(f"""
v_cvt_pk_bf16_f32 v84, v80, v81
v_cvt_pk_bf16_f32 v86, v82, v83
v_mov_b32 v85, s44
v_mov_b32 v87, s44
buffer_store_dwordx4 v[84:87], v63, s[40:43], s56 offen sc1
s_mov_b64 exec, -1
L_X_DONE:""")
    stamp(7)
    e(f"""
s_cmp_ge_u32 s6, 90
s_cbranch_scc1 L_RED
s_branch L_FIN""")

    e(f"""
L_Y:
; y = 2*(c*8 + (h&7)) + (h>>3)
s_and_b32 s6, s4, 7
s_lshl_b32 s7, s5, 3
s_add_u32 s6, s6, s7
s_lshl_b32 s6, s6, 1
s_lshr_b32 s7, s4, 3                    ; half
s_add_u32 s6, s6, s7                    ; y
v_and_b32 v1, 4, v0
v_cmp_eq_u32 vcc, 0, v1
v_mov_b32 v2, s30
v_mov_b32 v3, s31
v_mov_b32 v12, s28
v_mov_b32 v13, s29
v_cndmask_b32 v12, v2, v12, vcc
v_cndmask_b32 v13, v3, v13, vcc
v_mul_u32_u24 v1, 9216, v8
v_and_b32 v2, 3, v0
v_lshl_add_u32 v1, v2, 4, v1
s_mul_i32 s56, s3, {64*9216}
s_lshl_b32 s57, s6, 6
s_add_u32 s56, s56, s57
s_mul_i32 s57, s7, {4*8*9216}
s_add_u32 s57, s57, s56
v_add_u32 v2, s57, v1
v_add_co_u32 v14, vcc, v12, v2
v_addc_co_u32 v15, vcc, 0, v13, vcc
s_xor_b32 s58, s7, 1
s_mul_i32 s57, s58, {4*8*9216}
s_add_u32 s57, s57, s56
v_add_u32 v2, s57, v1
v_add_co_u32 v12, vcc, v12, v2
v_addc_co_u32 v13, vcc, 0, v13, vcc""")
    for sl in range(8):
        a = 14 if sl < 4 else 12
        e(f"global_load_dwordx4 v[{32+4*sl}:{35+4*sl}], v[{a}:{a+1}], off {gu_flags[0] if sl < 4 else gu_flags[1]}")
        if sl % 4 != 3:
            e(f"v_add_co_u32 v{a}, vcc, {8*9216}, v{a}\nv_addc_co_u32 v{a+1}, vcc, 0, v{a+1}, vcc")
    srd(8, 32, 4608*1152)
    e(f"""
v_mul_u32_u24 v10, 1152, v8
v_add_u32 v10, v10, v9
s_mul_i32 s56, s6, {32*1152}
s_lshl_b32 s57, s3, 7
s_add_u32 s56, s56, s57""")
    for t in range(4):
        e(f"buffer_load_dwordx4 v[{64+4*t}:{67+4*t}], v10, s[8:11], s56 offen nt\ns_add_u32 s56, s56, {8*1152}")
    srd(12, 16, 1152)
    e(f"""
v_and_b32 v1, 15, v0
v_lshrrev_b32 v2, 4, v0
v_lshl_add_u32 v3, v1, 2, v2            ; 4j+u
s_lshl_b32 s56, s3, 6
v_add_u32 v16, s56, v3                  ; col
v_lshlrev_b32 v17, 1, v16
buffer_load_ushort v18, v17, s[12:15], 0 offen
v_and_b32 v17, 1, v1
v_lshl_add_u32 v17, v17, 2, v2
v_lshlrev_b32 v17, 3, v17
v_lshrrev_b32 v19, 1, v1
v_add_u32 v17, v17, v19
v_add_u32 v17, s56, v17
v_lshlrev_b32 v17, 2, v17
v_add_u32 v17, {LHT}, v17
s_lshl_b32 s56, s3, 8
s_add_u32 s56, s56, {LHT}
v_lshl_add_u32 v19, v8, 5, s56
s_lshl_b32 s57, s7, 4
v_add_u32 v20, s57, v19
s_lshl_b32 s57, s58, 4
v_add_u32 v21, s57, v19
v_lshlrev_b32 v22, 5, v0
v_add_u32 v22, {LHT}, v22
v_lshlrev_b32 v23, 2, v0
v_add_u32 v23, {LHT+2048}, v23
v_mul_u32_u24 v24, 2304, v2
v_lshl_add_u32 v24, v1, 4, v24
v_mov_b32 v25, v24
v_cmp_gt_u32 s[46:47], 3, v2
v_mov_b32 v3, 0x7fffffff
v_cndmask_b32 v25, v3, v25, s[46:47]
s_lshl_b32 s56, s3, 8
s_add_u32 s56, s56, {WS_HP}
s_add_u32 s57, s56, {4*2304}
s_add_u32 s58, s56, {8*2304}
v_lshlrev_b32 v26, 5, v1
v_lshl_add_u32 v26, v2, 4, v26
s_lshl_b32 s59, s3, 8
s_add_u32 s59, s59, {LRR}
v_add_u32 v27, s59, v26
L_YG:
buffer_load_dwordx4 v[80:83], v24, s[40:43], s56 offen sc1
buffer_load_dwordx4 v[84:87], v24, s[40:43], s57 offen sc1
buffer_load_dwordx4 v[88:91], v25, s[40:43], s58 offen sc1
s_waitcnt vmcnt(0)
v_xor_b32 v92, s44, v81
v_xor_b32 v93, s44, v83
v_xor_b32 v94, s44, v85
v_xor_b32 v95, s44, v87
v_or3_b32 v92, v92, v93, v94
v_xor_b32 v93, s44, v89
v_xor_b32 v94, s44, v91
v_or_b32 v93, v93, v94
v_cndmask_b32 v93, 0, v93, s[46:47]
v_or3_b32 v92, v92, v93, v95
v_cmp_ne_u32 vcc, 0, v92""")
    spin_guard("L_YG", 62)
    stamp(6)
    for r, (reg, hi) in enumerate(((0, False), (0, True), (2, False), (2, True))):
        for k in range(3):
            src = 80 + 4*k + reg
            dst = 96 + r if k == 0 else 100
            if hi: e(f"v_and_b32 v{dst}, 0xffff0000, v{src}")
            else: e(f"v_lshlrev_b32 v{dst}, 16, v{src}")
            if k: e(f"v_add_f32 v{96+r}, v{96+r}, v100")
    e(f"""
v_permlane32_swap_b32 v96, v98
v_permlane32_swap_b32 v97, v99
v_add_f32 v96, v96, v98
v_add_f32 v97, v97, v99
v_permlane16_swap_b32 v96, v97
v_add_f32 v96, v96, v97""")
    rne(96, 96)
    e("v_lshlrev_b32 v18, 16, v18\nv_add_f32 v96, v96, v18")
    rne(96, 96)
    e(f"""
ds_write_b32 v17, v96
s_waitcnt lgkmcnt(0)
s_barrier                               ; BY1
ds_read_b128 v[80:83], v22
ds_read_b128 v[84:87], v22 offset:16
ds_read_b32 v88, v23
ds_read_b128 v[96:99], v20
ds_read_b128 v[100:103], v21
s_waitcnt lgkmcnt(2)
v_pk_add_f32 v[90:91], v[80:81], v[82:83]
v_pk_add_f32 v[92:93], v[84:85], v[86:87]
v_pk_add_f32 v[90:91], v[90:91], v[92:93]
v_add_f32 v90, v90, v91
v_add_f32 v90, v90, v88""")
    allreduce("v_add_f32", 90, 91)
    e(f"v_mul_f32 v90, {INV576:#x}, v90")
    e("v_sub_f32 v91, v88, v90\nv_mul_f32 v92, v91, v91")
    for i in range(8): e(f"v_sub_f32 v91, v{80+i}, v90\nv_fmac_f32 v92, v91, v91")
    allreduce("v_add_f32", 92, 91)
    e(f"v_mul_f32 v92, {INV576:#x}, v92")
    ln_tail(90, 92, 93, 94, 91)
    e("s_mov_b32 s60, 0x01000100\ns_mov_b32 s61, 0x03020302\ns_waitcnt lgkmcnt(0)")
    for i in range(4):
        a = 96 + 2*i
        e(f"""v_sub_f32 v{a}, v{a}, v93
v_sub_f32 v{a+1}, v{a+1}, v93
v_cvt_pk_bf16_f32 v88, v{a}, v{a+1}
v_lshlrev_b32 v89, 16, v88
v_and_b32 v90, 0xffff0000, v88
v_mul_f32 v89, v89, v94
v_mul_f32 v90, v90, v94
v_cvt_pk_bf16_f32 v88, v89, v90
v_perm_b32 v{a}, v88, v88, s60
v_perm_b32 v{a+1}, v88, v88, s61""")
    for sl in range(8):
        amask(104 + 4*(sl % 2), 96 + sl)
        c = "0" if sl == 0 else "v[112:115]"
        e(f"v_mfma_f32_16x16x32_bf16 v[112:115], v[{104+4*(sl%2)}:{107+4*(sl%2)}], v[{32+4*sl}:{35+4*sl}], {c}")
    half_reduce(112, 116)
    e(f"""
s_mov_b32 s56, 0x00ff00ff
s_mov_b32 s57, 0
s_mov_b64 exec, s[56:57]
ds_write_b128 v27, v[112:115]
s_mov_b64 exec, -1
v_lshlrev_b32 v1, 2, v0
v_add_u32 v1, {LRR}, v1
s_waitcnt lgkmcnt(0)
s_barrier                               ; BY2""")
    stamp(7)
    for w in range(9): e(f"ds_read_b32 v{80+w}, v1 offset:{256*w}")
    e(f"""
s_lshl_b32 s56, s3, 7
s_add_u32 s56, s56, {LAT}
v_and_b32 v2, 7, v0
v_lshlrev_b32 v2, 2, v2
v_add_u32 v2, v2, v8
v_lshl_add_u32 v2, v2, 2, s56
v_lshl_add_u32 v3, v8, 4, s56
s_waitcnt lgkmcnt(0)
v_add_f32 v80, v80, v81
v_add_f32 v82, v82, v83
v_add_f32 v84, v84, v85
v_add_f32 v86, v86, v87
v_add_f32 v80, v80, v82
v_add_f32 v84, v84, v86
v_add_f32 v80, v80, v88
v_add_f32 v80, v80, v84""")
    rne(80, 80)
    e(f"""
v_mov_b32 v81, v80
v_permlane32_swap_b32 v80, v81
v_mul_f32 v82, v80, v80
v_mul_f32 v82, 0x3d372713, v82
v_add_f32 v82, 1.0, v82
v_mul_f32 v82, v82, v80
v_mul_f32 v82, 0xc0135761, v82
v_exp_f32 v82, v82
v_add_f32 v82, 1.0, v82
v_rcp_f32 v82, v82
v_mul_f32 v82, v82, v80""")
    rne(82, 82)
    e(f"""
v_mul_f32 v82, v82, v81
v_cvt_pk_bf16_f32 v82, v82, v82
s_mov_b32 exec_lo, -1
s_mov_b32 exec_hi, 0
ds_write_b32 v2, v82
s_mov_b64 exec, -1
s_waitcnt lgkmcnt(0)
ds_read_b128 v[84:87], v3
v_and_b32 v1, 15, v0
v_lshrrev_b32 v2, 4, v0
v_and_b32 v3, 3, v1
v_lshlrev_b32 v3, 5, v3
v_lshl_add_u32 v3, v2, 4, v3
v_bfe_u32 v1, v1, 2, 1
v_mul_u32_u24 v1, 18432, v1
v_add_u32 v3, v3, v1
s_mul_i32 s56, s3, {2*18432}
s_lshl_b32 s57, s6, 7
s_add_u32 s56, s56, s57
s_add_u32 s56, s56, {WS_DP}
s_waitcnt lgkmcnt(0)""")
    for t in range(4):
        amask(104 + 4*(t % 2), 84 + t)
        c = "0" if t == 0 else "v[112:115]"
        e(f"v_mfma_f32_16x16x32_bf16 v[112:115], v[{104+4*(t%2)}:{107+4*(t%2)}], v[{64+4*t}:{67+4*t}], {c}")
    half_reduce(112, 116)
    e(f"""
v_cvt_pk_bf16_f32 v84, v112, v113
v_cvt_pk_bf16_f32 v86, v114, v115
v_mov_b32 v85, s44
v_mov_b32 v87, s44
s_mov_b32 s58, 0x00ff00ff
s_mov_b32 s59, 0
s_mov_b64 exec, s[58:59]
buffer_store_dwordx4 v[84:87], v3, s[40:43], s56 offen sc1
s_mov_b64 exec, -1""")
    stamp(8)
    e("s_branch L_FIN")

    e(f"""
L_RED:
s_cmp_lt_u32 s6, 90
s_cbranch_scc1 L_FIN
s_cmp_ge_u32 s6, 108
s_cbranch_scc1 L_FIN
s_sub_u32 s6, s6, 90                    ; rho
s_mov_b32 s62, {spin}
s_mul_i32 s56, s6, 18432
s_lshl_b32 s57, s3, 11
s_add_u32 s56, s56, s57
s_add_u32 s56, s56, {WS_DP}
s_add_u32 s57, s56, 1024
v_and_b32 v1, 7, v0
v_lshlrev_b32 v1, 4, v1
s_lshl_b32 s58, s3, 7
s_add_u32 s58, s58, {LRR}
v_add_u32 v27, s58, v1
s_cmp_eq_u32 s3, 0
s_cbranch_scc0 L_RG
; wave 0 additionally gathers h for its 32 columns: HP + rg*2304 + rho*128 + (l&7)*16 ; rg = 8k + (l>>3)""")
    srd(12, 16, 1152)
    e(f"""
s_lshl_b32 s58, s6, 6
v_and_b32 v2, 7, v0
v_lshlrev_b32 v2, 3, v2
v_add_u32 v2, s58, v2
buffer_load_dwordx2 v[18:19], v2, s[12:15], 0 offen
v_mul_u32_u24 v24, 2304, v8
v_add_u32 v24, v24, v1
v_cmp_gt_u32 s[46:47], 3, v8
v_mov_b32 v3, 0x7fffffff
v_cndmask_b32 v25, v3, v24, s[46:47]
s_lshl_b32 s58, s6, 7
s_add_u32 s58, s58, {WS_HP}
s_add_u32 s59, s58, {8*2304}
L_RH:
buffer_load_dwordx4 v[80:83], v24, s[40:43], s58 offen sc1
buffer_load_dwordx4 v[84:87], v25, s[40:43], s59 offen sc1
s_waitcnt vmcnt(0)
v_xor_b32 v92, s44, v81
v_xor_b32 v93, s44, v83
v_xor_b32 v94, s44, v85
v_xor_b32 v95, s44, v87
v_or_b32 v94, v94, v95
v_cndmask_b32 v94, 0, v94, s[46:47]
v_or3_b32 v92, v92, v93, v94
v_cmp_ne_u32 vcc, 0, v92""")
    spin_guard("L_RH", 62)
    def unpack_add(dst, srcs):
        for r, (reg, hi) in enumerate(((0, False), (0, True), (2, False), (2, True))):
            for k, s in enumerate(srcs):
                d = dst + r if k == 0 else 100
                if hi: e(f"v_and_b32 v{d}, 0xffff0000, v{s+reg}")
                else: e(f"v_lshlrev_b32 v{d}, 16, v{s+reg}")
                if k: e(f"v_add_f32 v{dst+r}, v{dst+r}, v100")
    def red8(d):
        for r in range(4): e(f"v_add_f32_dpp v{d+r}, v{d+r}, v{d+r} row_ror:8 row_mask:0xf bank_mask:0xf")
        for r in range(4): e(f"v_mov_b32 v{104+r}, v{d+r}")
        for r in range(4): e(f"v_permlane16_swap_b32 v{104+r}, v{d+r}")
        for r in range(4): e(f"v_add_f32 v{d+r}, v{d+r}, v{104+r}")
        for r in range(4): e(f"v_mov_b32 v{104+r}, v{d+r}")
        for r in range(4): e(f"v_permlane32_swap_b32 v{104+r}, v{d+r}")
        for r in range(4): e(f"v_add_f32 v{d+r}, v{d+r}, v{104+r}")
    unpack_add(28, (80, 84))
    red8(28)
    e("v_lshlrev_b32 v96, 16, v18\nv_and_b32 v97, 0xffff0000, v18\nv_lshlrev_b32 v98, 16, v19\nv_and_b32 v99, 0xffff0000, v19")
    for r in range(4):
        rne(28 + r, 28 + r)
        e(f"v_add_f32 v{28+r}, v{28+r}, v{96+r}")
        rne(28 + r, 28 + r)
    e(f"""
s_mov_b32 s62, {spin}
L_RG:
buffer_load_dwordx4 v[80:83], v11, s[40:43], s56 offen sc1
buffer_load_dwordx4 v[84:87], v11, s[40:43], s57 offen sc1
s_waitcnt vmcnt(0)
v_xor_b32 v92, s44, v81
v_xor_b32 v93, s44, v83
v_xor_b32 v94, s44, v85
v_xor_b32 v95, s44, v87
v_or3_b32 v92, v92, v93, v94
v_or_b32 v92, v92, v95
v_cmp_ne_u32 vcc, 0, v92""")
    spin_guard("L_RG", 62)
    stamp(8)
    unpack_add(96, (80, 84))
    red8(96)
    e(f"""
s_mov_b64 exec, 0xff
ds_write_b128 v27, v[96:99]
s_mov_b64 exec, -1
s_waitcnt lgkmcnt(0)
s_barrier                               ; BR1
s_cmp_eq_u32 s3, 0
s_cbranch_scc0 L_FIN
v_add_u32 v1, {LRR}, v1""")
    for w in range(9): e(f"ds_read_b128 v[{40+4*w}:{43+4*w}], v1 offset:{128*w}")
    srd(8, 34, 1152)
    e(f"""
s_lshl_b32 s58, s6, 6
v_and_b32 v2, 7, v0
v_lshlrev_b32 v2, 3, v2
v_add_u32 v2, s58, v2
s_waitcnt lgkmcnt(0)""")
    for w in range(1, 9):
        e(f"v_pk_add_f32 v[40:41], v[40:41], v[{40+4*w}:{41+4*w}]\nv_pk_add_f32 v[42:43], v[42:43], v[{42+4*w}:{43+4*w}]")
    for r in range(4):
        rne(40 + r, 40 + r)
        e(f"v_add_f32 v{40+r}, v{40+r}, v{28+r}")
    e(f"""
v_cvt_pk_bf16_f32 v40, v40, v41
v_cvt_pk_bf16_f32 v41, v42, v43
s_mov_b64 exec, 0xff
buffer_store_dwordx2 v[40:41], v2, s[8:11], 0 offen
s_cmp_eq_u32 s6, 0
s_cbranch_scc0 L_FIN0
s_add_u32 s45, s45, 1
v_mov_b32 v3, s45
v_mov_b32 v2, 0
s_mov_b64 exec, 1
buffer_store_dword v3, v2, s[40:43], 0 offen sc1
L_FIN0:
s_mov_b64 exec, -1
L_FIN:""")
    if diag:
        stamp(9)
        e(f"""
s_waitcnt lgkmcnt(0)
s_mul_i32 s56, s2, 9
s_add_u32 s56, s56, s3
s_lshl_b32 s56, s56, 6
s_add_u32 s56, s56, {WS_DIAG}
v_mov_b32 v2, 0
s_mov_b64 exec, 1""")
        srd(40, 38, WS_SIZE)
        for i in range(16):
            e(f"v_mov_b32 v3, s{64+2*i}\nbuffer_store_dword v3, v2, s[40:43], s56 offen offset:{4*i}")
    e("L_END:\ns_endpgm")
    body, nn = e.text()
    return body, nn

HEADER = open(os.path.join(os.path.dirname(os.path.abspath(__file__)), "header.txt")).read()

def full(**kw):
    body, nn = gen(**kw)
    s = HEADER.replace("@@LAUNCH@@", f"; @launch grid=(256,1,1) block=(576,1,1) lds={LDS_BYTES}")
    s += f""".amdgcn_target "amdgcn-amd-amdhsa--gfx950"
.text
.globl {NAME}
.p2align 8
.type {NAME},@function
{NAME}:
{body}.section .rodata,"a"
.p2align 6
.amdhsa_kernel {NAME}
  .amdhsa_next_free_vgpr 136
  .amdhsa_next_free_sgpr 102
  .amdhsa_accum_offset 136
  .amdhsa_group_segment_fixed_size 0
  .amdhsa_kernarg_size 96
  .amdhsa_user_sgpr_count 2
  .amdhsa_user_sgpr_kernarg_segment_ptr 1
  .amdhsa_system_sgpr_workgroup_id_x 1
  .amdhsa_float_denorm_mode_32 3
.end_amdhsa_kernel
"""
    return s, nn

if __name__ == "__main__":
    diag = "--diag" in sys.argv
    out = [a for a in sys.argv[1:] if not a.startswith("--")]
    s, nn = full(diag=diag)
    open(out[0] if out else "out.s", "w").write(s)
    print("nops inserted:", nn, "lines:", s.count("\n"))
```

```python
import sys, os
sys.path.insert(0, os.path.dirname(os.path.abspath(__file__)))
from emit import Emit

NAME = "sequential_preLN__sliding_block_cached__geglu_ffn__decode_kernel"

WS_E  = 0x0
WS_QP = 0x1000
WS_OP = 0x22000
WS_ST = 0x62000
WS_HP = 0x64000
WS_DP = 0x6C000
WS_DIAG = 0xC0000
WS_SIZE = 0x100000
LK  = 0
LXD = 65536
LQR = 68096
LQB = 77312
LMX = 77824
LLS = 77952
LPT = 78080
LHT = 80128
LOT = 82688
LAT = 86784
LRR = 88064
LDS_BYTES = 98304

LOG2E = 0x3fb8aa3b
SCALE = 0x3db504f3
INV576 = 0x3ae38e39
EPS = 0x3727c5ac

def gen(diag=False, spin=200000, gu_flags=("nt", "nt"), prepoll=True, padT=0):
    e = Emit()
    stamp_n = [0]
    def stamp(i):
        if diag: e(f"s_memrealtime s[{64+2*i}:{65+2*i}]")
    def srd(d, lo, nrec):
        e(f"s_mov_b32 s{d}, s{lo}\ns_mov_b32 s{d+1}, s{lo+1}\ns_mov_b32 s{d+2}, {nrec}\ns_mov_b32 s{d+3}, 0x20000")
    def allreduce(op, v, t, row=True, cross=True, parity=False):
        if row:
            if not parity: e(f"{op}_dpp v{v}, v{v}, v{v} quad_perm:[1,0,3,2] row_mask:0xf bank_mask:0xf")
            e(f"{op}_dpp v{v}, v{v}, v{v} quad_perm:[2,3,0,1] row_mask:0xf bank_mask:0xf")
            e(f"{op}_dpp v{v}, v{v}, v{v} row_ror:4 row_mask:0xf bank_mask:0xf")
            e(f"{op}_dpp v{v}, v{v}, v{v} row_ror:8 row_mask:0xf bank_mask:0xf")
        if cross:
            e(f"v_mov_b32 v{t}, v{v}\nv_permlane16_swap_b32 v{t}, v{v}\n{op} v{v}, v{v}, v{t}")
            e(f"v_mov_b32 v{t}, v{v}\nv_permlane32_swap_b32 v{t}, v{v}\n{op} v{v}, v{v}, v{t}")
    def rne(dst, src, t=None):
        e(f"v_cvt_pk_bf16_f32 v{dst}, v{src}, v{src}\nv_lshlrev_b32 v{dst}, 16, v{dst}")
    def ln_tail(vmean, vvar, vm, vr, t):
        rne(vm, vmean)
        rne(t, vvar)
        e(f"v_add_f32 v{t}, {EPS:#x}, v{t}")
        rne(t, t)
        e(f"v_sqrt_f32 v{t}, v{t}")
        rne(t, t)
        e(f"v_rcp_f32 v{vr}, v{t}")
    def half_reduce(d0, t0):
        for r in range(4): e(f"v_mov_b32_dpp v{t0+r}, v{d0+r} row_ror:8 row_mask:0xf bank_mask:0xf")
        for r in range(4): e(f"v_permlane32_swap_b32 v{t0+r}, v{t0+4+r}")
        for r in range(4): e(f"v_add_f32 v{d0+r}, v{d0+r}, v{t0+4+r}")
    def amask(a0, x):
        for k in range(4): e(f"v_and_b32 v{a0+k}, v{x}, v{4+k}")
    def spin_guard(lbl_retry, sreg, vcc_fail=True):
        e(f"s_sub_u32 s{sreg}, s{sreg}, 1\ns_cbranch_scc1 {lbl_retry}_out\ns_cbranch_vccnz {lbl_retry}\n{lbl_retry}_out:")

    e(f"""
s_cmp_ge_u32 s2, 256
s_cbranch_scc1 L_END""")
    stamp(0)
    if padT: e("s_memrealtime s[98:99]")
    e(f"""
s_load_dwordx16 s[16:31], s[0:1], 0
s_load_dwordx8 s[32:39], s[0:1], 64
v_lshrrev_b32 v1, 6, v0
v_and_b32 v0, 63, v0
v_readfirstlane_b32 s3, v1
s_and_b32 s4, s2, 15
s_lshr_b32 s5, s2, 4
s_lshr_b32 s6, s5, 2
s_and_b32 s7, s5, 3
v_lshrrev_b32 v8, 3, v0
v_and_b32 v9, 7, v0
v_lshlrev_b32 v9, 4, v9
v_lshlrev_b32 v11, 4, v0
v_lshl_add_u32 v10, v8, 13, v9
s_mul_i32 s56, s6, {144*8192}
s_lshl_b32 s57, s4, 9
s_add_u32 s56, s56, s57
s_lshl_b32 s57, s7, 7
s_add_u32 s56, s56, s57
s_lshl_b32 s57, s3, 17
s_add_u32 s56, s56, s57
s_add_u32 s57, s56, 65536
s_lshl_b32 s58, s4, 24
s_lshl_b32 s59, s5, 16
s_add_u32 s58, s58, s59
s_add_u32 s58, s58, {61440*256}
s_cmp_eq_u32 s3, 8
s_waitcnt lgkmcnt(0)
s_load_dword s45, s[38:39], 0
s_cbranch_scc1 L_W8""")
    srd(8, 22, 576*8192)
    e(f"""
buffer_load_dwordx4 v[12:15], v10, s[8:11], s56 offen nt
buffer_load_dwordx4 v[16:19], v10, s[8:11], s57 offen nt
s_add_u32 s12, s18, s58
s_addc_u32 s13, s19, 0
s_mov_b32 s14, 65536
s_mov_b32 s15, 0x20000
v_lshrrev_b32 v1, 4, v0
v_and_b32 v2, 15, v0
v_xor_b32 v2, v2, v1
v_lshlrev_b32 v1, 8, v1
v_lshl_add_u32 v28, v2, 4, v1""")
    for t in range(1, 4):
        e(f"v_xor_b32 v3, {4*t}, v2\nv_lshl_add_u32 v{28+t}, v3, 4, v1")
    e(f"s_lshl_b32 s59, s3, 13\ns_mov_b32 m0, s59")
    def kdma(t):
        e(f"buffer_load_dwordx4 v{28+(t%4)}, s[12:15], s59 offen nt lds")
        e(f"s_add_u32 m0, m0, 1024\ns_add_u32 s59, s59, 1024")
    kdma(0); kdma(1)
    def masks():
        e(f"""
v_and_b32 v1, 1, v0
v_lshlrev_b32 v1, 4, v1
v_mov_b32 v2, 0xffff
v_lshlrev_b32 v2, v1, v2
v_bfe_u32 v3, v0, 1, 2""")
        for k in range(4): e(f"v_cmp_eq_u32 vcc, {k}, v3\nv_cndmask_b32 v{4+k}, 0, v2, vcc")
    masks()
    def qmfma(nafter):
        stamp(15)
        e(f"""
s_mul_i32 s60, s6, {144*4}
s_lshl_b32 s61, s3, 6
s_add_u32 s60, s60, s61
s_add_u32 s60, s60, {LXD}
v_lshl_add_u32 v62, v8, 2, s60
s_lshl_b32 s61, s3, 10
s_add_u32 s61, s61, {LQR}
v_add_u32 v63, s61, v11
s_barrier
@@S13@@
ds_read_b32 v60, v62
ds_read_b32 v61, v62 offset:32
s_waitcnt lgkmcnt(1)""".replace("@@S13@@", "s_memrealtime s[90:91]" if diag else ""))
        amask(64, 60)
        e(f"s_waitcnt vmcnt({nafter+1}) lgkmcnt(0)")
        stamp(14)
        e("v_mfma_f32_16x16x32_bf16 v[68:71], v[64:67], v[12:15], 0")
        amask(72, 61)
        e(f"s_waitcnt vmcnt({nafter})")
        e("v_mfma_f32_16x16x32_bf16 v[68:71], v[72:75], v[16:19], v[68:71]")
        e("ds_write_b128 v63, v[68:71]\ns_waitcnt lgkmcnt(0)\ns_barrier")
    qmfma(2)
    stamp(1)
    e("s_barrier")
    for t in range(2, 8): kdma(t)
    e(f"""
s_add_u32 s8, s20, s58
s_addc_u32 s9, s21, 0
s_mov_b32 s10, 65536
s_lshl_b32 s59, s3, 13""")
    for n in range(8):
        e(f"buffer_load_dwordx4 v[{32+4*n}:{35+4*n}], v11, s[8:11], s59 offen nt\ns_add_u32 s59, s59, 1024")
    stamp(2)
    e(f"""
v_and_b32 v1, 15, v0            ; i / j
v_lshrrev_b32 v2, 4, v0         ; g / q4
v_xor_b32 v3, v1, v2            ; (g ^ i)
s_lshl_b32 s59, s3, 13
v_lshl_add_u32 v64, v1, 8, s59
""")
    for cc in range(4):
        e(f"v_xor_b32 v65, {4*cc}, v3\nv_lshl_add_u32 v{66+cc}, v65, 4, v64")
    e(f"""
v_and_b32 v65, 1, v1
v_lshlrev_b32 v65, 8, v65
v_lshl_add_u32 v65, v2, 4, v65
v_add_u32 v70, {LQB}, v65
v_and_b32 v65, 2, v1
v_cmp_ne_u32 s[46:47], 0, v65
v_and_b32 v65, 4, v1
v_cmp_ne_u32 s[48:49], 0, v65
v_and_b32 v65, 8, v1
v_cmp_ne_u32 s[50:51], 0, v65
v_and_b32 v65, 1, v1
v_lshlrev_b32 v71, 5, v65
v_add_u32 v71, {LMX}, v71
v_bfe_u32 v72, v1, 1, 2
v_lshl_add_u32 v72, v65, 2, v72
v_lshlrev_b32 v72, 3, v72
v_lshrrev_b32 v73, 3, v1
v_lshl_add_u32 v73, v73, 2, v2
v_add_u32 v72, v72, v73
s_lshl_b32 s59, s3, 8
s_add_u32 s59, s59, {LPT}
v_lshl_add_u32 v72, v72, 2, s59
v_lshrrev_b32 v73, 3, v1
v_lshl_add_u32 v73, v73, 2, v2
v_lshl_add_u32 v73, v73, 5, s59
s_barrier                       ; B2 (V issued)
s_barrier                       ; B3 (q ready)
""")
    for cc in range(4): e(f"ds_read_b128 v[{76+4*cc}:{79+4*cc}], v70 offset:{64*cc}")
    e("s_waitcnt vmcnt(8)")
    stamp(3)
    for T in range(2):
        for cc in range(4):
            e(f"ds_read_b128 v[{92+16*T+4*cc}:{95+16*T+4*cc}], v{66+cc} offset:{4096*T}")
    for T in range(2):
        for cc in range(4):
            e(f"s_waitcnt lgkmcnt({7-(4*T+cc)})")
            c = "0" if cc == 0 else f"v[{124+4*T}:{127+4*T}]"
            e(f"v_mfma_f32_16x16x32_bf16 v[{124+4*T}:{127+4*T}], v[{92+16*T+4*cc}:{95+16*T+4*cc}], v[{76+4*cc}:{79+4*cc}], {c}")
    e(f"""
v_cndmask_b32 v92, v124, v125, s[46:47]
v_cndmask_b32 v93, v126, v127, s[46:47]
v_cndmask_b32 v94, v128, v129, s[46:47]
v_cndmask_b32 v95, v130, v131, s[46:47]
v_cndmask_b32 v92, v92, v93, s[48:49]
v_cndmask_b32 v94, v94, v95, s[48:49]
v_cndmask_b32 v92, v92, v94, s[50:51]""")
    rne(92, 92)
    e(f"v_mul_f32 v92, {SCALE:#x}, v92")
    rne(92, 92)
    e("v_mov_b32 v93, v92")
    allreduce("v_max_f32", 93, 94, parity=True)
    e(f"""
s_lshl_b32 s59, s3, 2
v_add_u32 v94, s59, v71
ds_write_b32 v94, v93
s_waitcnt lgkmcnt(0)
s_barrier                       ; B4
ds_read_b128 v[96:99], v71
ds_read_b128 v[100:103], v71 offset:16
s_waitcnt lgkmcnt(0)
v_max3_f32 v96, v96, v97, v98
v_max3_f32 v99, v99, v100, v101
v_max3_f32 v96, v96, v102, v103
v_max_f32 v96, v96, v99
v_sub_f32 v92, v92, v96
v_mul_f32 v92, {LOG2E:#x}, v92
v_exp_f32 v92, v92
v_cvt_pk_bf16_f32 v93, v92, v92
ds_write_b32 v72, v93""")
    allreduce("v_add_f32", 92, 94, parity=True)
    e(f"""
ds_write_b32 v94, v92
""".replace("v94", "v95") if False else "")
    e(f"""
s_lshl_b32 s59, s3, 2
v_add_u32 v95, s59, v71
ds_write_b32 v95, v92 offset:{LLS-LMX}
s_waitcnt lgkmcnt(0)
ds_read_b128 v[96:99], v73
ds_read_b128 v[100:103], v73 offset:16
s_lshl_b32 s59, s3, 10
s_add_u32 s59, s59, {LQR}
v_add_u32 v74, s59, v11
s_waitcnt lgkmcnt(0)""")
    stamp(4)
    for n in range(8):
        amask(104 + 4*(n % 2), 96 + n)
        e(f"s_waitcnt vmcnt({7-n})")
        c = "0" if n == 0 else "v[112:115]"
        e(f"v_mfma_f32_16x16x32_bf16 v[112:115], v[{104+4*(n%2)}:{107+4*(n%2)}], v[{32+4*n}:{35+4*n}], {c}")
    stamp(5)
    e(f"""
ds_write_b128 v74, v[112:115]
s_waitcnt lgkmcnt(0)
s_barrier                       ; B5
s_barrier                       ; B6
s_branch L_ROLE""")

    e("L_W8:")
    srd(12, 16, 1152)
    e(f"""
buffer_load_dwordx4 v[20:23], v11, s[12:15], 0 offen
buffer_load_dwordx4 v[24:27], v11, s[12:15], 0 offen offset:1024""")
    srd(8, 22, 576*8192)
    e(f"""
buffer_load_dwordx4 v[12:15], v10, s[8:11], s56 offen nt
buffer_load_dwordx4 v[16:19], v10, s[8:11], s57 offen nt""")
    masks()
    stamp(10)
    e("s_waitcnt vmcnt(2)")
    stamp(11)
    for i in range(8):
        e(f"v_lshlrev_b32 v{32+2*i}, 16, v{20+i}\nv_and_b32 v{33+2*i}, 0xffff0000, v{20+i}")
    e("v_pk_add_f32 v[48:49], v[32:33], v[34:35]")
    for i in range(2, 8): e(f"v_pk_add_f32 v[48:49], v[48:49], v[{32+2*i}:{33+2*i}]")
    e("v_add_f32 v48, v48, v49")
    allreduce("v_add_f32", 48, 49)
    e(f"v_mul_f32 v48, {INV576:#x}, v48     ; mean")
    e("v_cmp_gt_u32 vcc, 8, v0")
    e("v_mov_b32 v50, 0")
    for i in range(16):
        e(f"v_sub_f32 v51, v{32+i}, v48")
        if i >= 8: e("v_cndmask_b32 v51, 0, v51, vcc")
        e("v_fmac_f32 v50, v51, v51")
    allreduce("v_add_f32", 50, 49)
    e(f"v_mul_f32 v50, {INV576:#x}, v50     ; var")
    ln_tail(48, 50, 52, 53, 49)
    e("s_mov_b32 s60, 0x01000100\ns_mov_b32 s61, 0x03020302")
    for i in range(8):
        e(f"""v_sub_f32 v{32+2*i}, v{32+2*i}, v52
v_sub_f32 v{33+2*i}, v{33+2*i}, v52
v_cvt_pk_bf16_f32 v54, v{32+2*i}, v{33+2*i}
v_lshlrev_b32 v55, 16, v54
v_and_b32 v56, 0xffff0000, v54
v_mul_f32 v55, v55, v53
v_mul_f32 v56, v56, v53
v_cvt_pk_bf16_f32 v54, v55, v56
v_perm_b32 v{32+2*i}, v54, v54, s60
v_perm_b32 v{33+2*i}, v54, v54, s61""")
    e(f"""
v_lshlrev_b32 v54, 5, v0
v_add_u32 v54, {LXD}, v54
ds_write_b128 v54, v[32:35]
ds_write_b128 v54, v[36:39] offset:16
s_mov_b64 exec, 0xff
ds_write_b128 v54, v[40:43] offset:2048
ds_write_b128 v54, v[44:47] offset:2064
s_mov_b64 exec, -1
s_waitcnt lgkmcnt(0)""")
    stamp(12)
    qmfma(0)
    stamp(1)
    e(f"v_add_u32 v63, {LQR}, v11")
    for w in range(9): e(f"ds_read_b128 v[{80+4*w}:{83+4*w}], v63 offset:{1024*w}")
    e(f"""
s_waitcnt lgkmcnt(0)
; tag
s_mul_i32 s44, s45, 0x9E3779B1
s_add_u32 s44, s44, 0x85EBCA6B""")
    for w in range(1, 9):
        e(f"v_pk_add_f32 v[80:81], v[80:81], v[{80+4*w}:{81+4*w}]\nv_pk_add_f32 v[82:83], v[82:83], v[{82+4*w}:{83+4*w}]")
    half_reduce(80, 84)
    e(f"""
v_mov_b32_dpp v84, v82 row_ror:8 row_mask:0xf bank_mask:0xf
v_mov_b32_dpp v85, v83 row_ror:8 row_mask:0xf bank_mask:0xf
v_and_b32 v1, 15, v0
v_cmp_lt_u32 vcc, 7, v1
v_cndmask_b32 v88, v80, v84, vcc
v_cndmask_b32 v90, v81, v85, vcc
v_mov_b32 v89, s44
v_mov_b32 v91, s44
v_and_b32 v2, 7, v1
v_lshlrev_b32 v2, 6, v2
v_lshrrev_b32 v3, 4, v0
v_lshl_add_u32 v2, v3, 5, v2
v_lshrrev_b32 v3, 3, v1
v_lshl_add_u32 v2, v3, 4, v2
s_lshl_b32 s56, s4, 13
s_lshl_b32 s57, s6, 11
s_add_u32 s56, s56, s57
s_lshl_b32 s57, s7, 9
s_add_u32 s56, s56, s57
s_add_u32 s56, s56, {WS_QP}""")
    srd(40, 38, WS_SIZE)
    e(f"""
s_mov_b32 exec_lo, -1
s_mov_b32 exec_hi, 0
buffer_store_dwordx4 v[88:91], v2, s[40:43], s56 offen sc1
s_mov_b64 exec, -1
s_barrier                       ; B1b""")
    stamp(2)
    e(f"""
s_lshl_b32 s56, s4, 13
s_add_u32 s56, s56, {WS_QP}
s_mov_b32 s62, {spin}""")
    if prepoll:
        e(f"""
s_add_u32 s12, s38, s56
s_addc_u32 s13, s39, 0
L_QPP:""")
        for half in range(2):
            for i in range(8):
                e(f"s_load_dword s{96+0 if False else 46+i}, s[12:13], {(half*8+i)*512+508} glc")
            e("s_waitcnt lgkmcnt(0)")
            if half == 0: e("s_xor_b32 s63, s46, s44")
            else: e("s_xor_b32 s54, s46, s44\ns_or_b32 s63, s63, s54")
            for i in range(1, 8): e(f"s_xor_b32 s54, s{46+i}, s44\ns_or_b32 s63, s63, s54")
        e(f"""
s_sub_u32 s62, s62, 1
s_cbranch_scc1 L_QPP_out
s_cmp_lg_u32 s63, 0
s_cbranch_scc1 L_QPP
L_QPP_out:""")
    e("L_QG:")
    for kp in range(4):
        for hd in range(2):
            i = kp*2 + hd
            off = kp*2048 + hd*1024
            e(f"s_add_u32 s57, s56, {off}\nbuffer_load_dwordx4 v[{80+4*i}:{83+4*i}], v11, s[40:43], s57 offen sc1")
    e("s_waitcnt vmcnt(0)")
    e("v_xor_b32 v112, s44, v81\nv_xor_b32 v113, s44, v83\nv_or_b32 v112, v112, v113")
    for i in range(1, 8):
        e(f"v_xor_b32 v113, s44, v{81+4*i}\nv_xor_b32 v114, s44, v{83+4*i}\nv_or3_b32 v112, v112, v113, v114")
    e("v_cmp_ne_u32 vcc, 0, v112")
    spin_guard("L_QG", 62)
    stamp(3)
    for hd in range(2):
        a = 80 + 4*hd
        for kp in range(1, 4):
            b = 80 + 4*(kp*2+hd)
            e(f"v_add_f32 v{a}, v{a}, v{b}\nv_add_f32 v{a+2}, v{a+2}, v{b+2}")
        e(f"v_cvt_pk_bf16_f32 v{a}, v{a}, v{a+2}")
    e(f"""
v_lshlrev_b32 v1, 2, v0
v_add_u32 v1, {LQB}, v1
ds_write_b32 v1, v80
ds_write_b32 v1, v84 offset:256
s_waitcnt lgkmcnt(0)
s_barrier                       ; B2
s_barrier                       ; B3
s_barrier                       ; B4
v_and_b32 v1, 15, v0
v_lshrrev_b32 v2, 4, v0
v_lshlrev_b32 v3, 5, v1
v_and_b32 v60, 1, v2
v_lshl_add_u32 v3, v60, 4, v3
v_lshrrev_b32 v60, 1, v2
v_lshl_add_u32 v60, v60, 13, v3      ; voffset
s_lshl_b32 s56, s4, 14
s_lshl_b32 s57, s5, 9
s_add_u32 s56, s56, s57
s_add_u32 s56, s56, {WS_OP}
v_lshlrev_b32 v61, 8, v0
s_lshl_b32 s57, s4, 9
s_lshl_b32 s58, s5, 4
s_add_u32 s57, s57, s58
s_add_u32 s57, s57, {WS_ST}
v_lshlrev_b32 v62, 5, v0
v_add_u32 v62, {LMX}, v62
v_add_u32 v63, {LQR}, v11
s_barrier                       ; B5""")
    for w in range(8): e(f"ds_read_b128 v[{80+4*w}:{83+4*w}], v63 offset:{1024*w}")
    e(f"""
s_mov_b64 exec, 3
ds_read_b128 v[112:115], v62
ds_read_b128 v[116:119], v62 offset:16
ds_read_b128 v[120:123], v62 offset:{LLS-LMX}
ds_read_b128 v[124:127], v62 offset:{LLS-LMX+16}
s_mov_b64 exec, -1
s_waitcnt lgkmcnt(4)""")
    for w in range(1, 8):
        e(f"v_pk_add_f32 v[80:81], v[80:81], v[{80+4*w}:{81+4*w}]\nv_pk_add_f32 v[82:83], v[82:83], v[{82+4*w}:{83+4*w}]")
    e(f"""
v_cvt_pk_bf16_f32 v84, v80, v81
v_cvt_pk_bf16_f32 v86, v82, v83
v_mov_b32 v85, s44
v_mov_b32 v87, s44
buffer_store_dwordx4 v[84:87], v60, s[40:43], s56 offen sc1
s_waitcnt lgkmcnt(0)
v_max3_f32 v112, v112, v113, v114
v_max3_f32 v115, v115, v116, v117
v_max3_f32 v112, v112, v118, v119
v_max_f32 v112, v112, v115
v_pk_add_f32 v[120:121], v[120:121], v[122:123]
v_pk_add_f32 v[124:125], v[124:125], v[126:127]
v_pk_add_f32 v[120:121], v[120:121], v[124:125]
v_add_f32 v114, v120, v121
v_mov_b32 v113, s44
v_mov_b32 v115, s44
s_mov_b64 exec, 3
buffer_store_dwordx4 v[112:115], v61, s[40:43], s57 offen sc1
s_mov_b64 exec, -1
s_barrier                       ; B6""")
    stamp(5)

    e(f"""
L_ROLE:
s_mul_i32 s44, s45, 0x9E3779B1
s_add_u32 s44, s44, 0x85EBCA6B""")
    srd(40, 38, WS_SIZE)
    e(f"""
s_mov_b32 s62, {spin}
s_cmp_lt_u32 s5, 9
s_cbranch_scc1 L_Y
s_sub_u32 s6, s5, 9
s_lshl_b32 s6, s6, 4
s_add_u32 s6, s6, s4          ; x index 0..111
s_cmp_lt_u32 s6, 99
s_cbranch_scc1 L_X
s_branch L_RED""")

    e(f"""
L_X:
s_mul_hi_u32 s7, s6, {(2**32+8)//9}     ; rg = x/9
s_mul_i32 s56, s7, 9
s_sub_u32 s5, s6, s56                   ; cg
s_cmp_eq_u32 s3, 8
s_cbranch_scc1 L_X_SYNC1""")
    srd(8, 24, 4096*1152)
    e(f"""
v_mul_u32_u24 v10, 1152, v8
v_add_u32 v10, v10, v9
s_mul_i32 s56, s7, {384*1152}
s_mul_i32 s57, s3, {48*1152}
s_add_u32 s56, s56, s57
s_lshl_b32 s57, s5, 7
s_add_u32 s56, s56, s57""")
    for t in range(6):
        e(f"buffer_load_dwordx4 v[{32+4*t}:{35+4*t}], v10, s[8:11], s56 offen nt\ns_add_u32 s56, s56, {8*1152}")
    e(f"""
s_lshl_b32 s56, s3, 8
s_add_u32 s56, s56, {LOT}
v_lshl_add_u32 v62, v8, 5, s56
s_lshl_b32 s56, s3, 8
s_add_u32 s56, s56, {LRR}
v_and_b32 v1, 15, v0
v_lshrrev_b32 v2, 4, v0
v_lshlrev_b32 v63, 5, v1
v_lshl_add_u32 v63, v2, 4, v63
v_add_u32 v63, s56, v63
s_cmp_ge_u32 s3, 6
s_cbranch_scc1 L_X_SYNC1
s_lshr_b32 s56, s3, 1
s_and_b32 s57, s3, 1
s_mul_i32 s58, s7, 3
s_add_u32 s58, s58, s56                 ; q head
v_and_b32 v1, 31, v0
v_lshlrev_b32 v1, 2, v1
v_lshrrev_b32 v2, 5, v0
v_lshl_add_u32 v1, v2, 1, v1
s_lshl_b32 s59, s56, 7
v_add_u32 v1, s59, v1                   ; r0 (0..383)
v_mul_u32_u24 v2, 1366, v1
v_lshrrev_b32 v2, 16, v2                ; r0/48
v_mul_u32_u24 v3, 48, v2
v_sub_u32 v3, v1, v3                    ; rem
v_lshrrev_b32 v60, 3, v3                ; tau
v_and_b32 v3, 7, v3
v_lshlrev_b32 v2, 6, v2
v_lshl_add_u32 v2, v3, 3, v2
v_add_u32 v2, v2, v60
s_lshl_b32 s59, s57, 11
s_add_u32 s59, s59, {LOT}
v_lshl_add_u32 v60, v2, 2, s59
s_cmp_ge_u32 s58, 32
s_cbranch_scc1 L_X_ZERO
s_lshl_b32 s59, s58, 13
s_lshl_b32 s60, s57, 12
s_add_u32 s59, s59, s60
s_add_u32 s59, s59, {WS_OP}             ; + k*1024
s_lshl_b32 s60, s58, 8
s_add_u32 s60, s60, {WS_ST}
v_and_b32 v1, 15, v0
v_lshlrev_b32 v61, 4, v1
v_lshrrev_b32 v1, 5, v0
s_lshl_b32 s61, s57, 3
v_add_u32 v1, s61, v1
v_lshlrev_b32 v56, 2, v1
L_XG:
buffer_load_dwordx4 v[64:67], v61, s[40:43], s60 offen sc1""")
    for k in range(4):
        e(f"s_add_u32 s61, s59, {1024*k}\nbuffer_load_dwordx4 v[{68+4*k}:{71+4*k}], v11, s[40:43], s61 offen sc1")
    e(f"""
s_waitcnt vmcnt(0)
v_xor_b32 v84, s44, v65
v_xor_b32 v85, s44, v67
v_or_b32 v84, v84, v85""")
    for k in range(4):
        e(f"v_xor_b32 v85, s44, v{69+4*k}\nv_xor_b32 v86, s44, v{71+4*k}\nv_or3_b32 v84, v84, v85, v86")
    e("v_cmp_ne_u32 vcc, 0, v84")
    spin_guard("L_XG", 62)
    stamp(6)
    e("v_mov_b32 v84, v64")
    allreduce("v_max_f32", 84, 85, cross=False)
    e(f"""
v_sub_f32 v84, v64, v84
v_mul_f32 v84, {LOG2E:#x}, v84
v_exp_f32 v84, v84
v_mul_f32 v85, v84, v66""")
    allreduce("v_add_f32", 85, 86, cross=False)
    e(f"""
v_rcp_f32 v85, v85
v_mul_f32 v84, v84, v85                 ; w_c / L
""")
    for k in range(4):
        e(f"v_add_u32 v86, {8*k}, v56\nds_bpermute_b32 v{88+k}, v86, v84")
    e("v_mov_b32 v92, 0\nv_mov_b32 v93, 0\nv_mov_b32 v94, 0\nv_mov_b32 v95, 0")
    for k in range(4):
        b = 68 + 4*k
        e(f"""s_waitcnt lgkmcnt({3-k})
v_lshlrev_b32 v96, 16, v{b}
v_and_b32 v97, 0xffff0000, v{b}
v_lshlrev_b32 v98, 16, v{b+2}
v_and_b32 v99, 0xffff0000, v{b+2}
v_fmac_f32 v92, v96, v{88+k}
v_fmac_f32 v93, v97, v{88+k}
v_fmac_f32 v94, v98, v{88+k}
v_fmac_f32 v95, v99, v{88+k}""")
    e(f"""
v_permlane32_swap_b32 v92, v94
v_permlane32_swap_b32 v93, v95
v_add_f32 v92, v92, v94
v_add_f32 v93, v93, v95
s_branch L_X_WR
L_X_ZERO:
v_mov_b32 v92, 0
v_mov_b32 v93, 0
L_X_WR:
ds_write_b32 v60, v92
ds_write_b32 v60, v93 offset:32
s_waitcnt lgkmcnt(0)
L_X_SYNC1:
s_barrier                               ; BX1
s_cmp_eq_u32 s3, 8
s_cbranch_scc1 L_X_SYNC2
ds_read_b128 v[64:67], v62
ds_read_b64 v[68:69], v62 offset:16
ds_read_b128 v[72:75], v62 offset:2048
ds_read_b64 v[76:77], v62 offset:2064
s_mov_b32 s60, 0x01000100
s_waitcnt lgkmcnt(0)
v_pk_add_f32 v[64:65], v[64:65], v[72:73]
v_pk_add_f32 v[66:67], v[66:67], v[74:75]
v_pk_add_f32 v[68:69], v[68:69], v[76:77]""")
    for t in range(6):
        e(f"v_cvt_pk_bf16_f32 v{64+t}, v{64+t}, v{64+t}")
    for t in range(6):
        amask(72 + 4*(t % 2), 64 + t)
        e(f"s_waitcnt vmcnt({5-t})")
        c = "0" if t == 0 else "v[80:83]"
        e(f"v_mfma_f32_16x16x32_bf16 v[80:83], v[{72+4*(t%2)}:{75+4*(t%2)}], v[{32+4*t}:{35+4*t}], {c}")
    half_reduce(80, 84)
    e(f"""
s_mov_b32 s56, 0x00ff00ff
s_mov_b32 s57, 0
s_mov_b64 exec, s[56:57]
ds_write_b128 v63, v[80:83]
s_mov_b64 exec, -1
s_waitcnt lgkmcnt(0)
L_X_SYNC2:
s_barrier                               ; BX2
s_cmp_eq_u32 s3, 8
s_cbranch_scc0 L_X_DONE
v_and_b32 v1, 15, v0
v_lshrrev_b32 v2, 4, v0
v_lshlrev_b32 v63, 5, v1
v_lshl_add_u32 v63, v2, 4, v63          ; (8j+4q)*4
v_add_u32 v62, {LRR}, v63
s_mov_b32 s56, 0x00ff00ff
s_mov_b32 s57, 0
s_mov_b64 exec, s[56:57]""")
    for w in range(8): e(f"ds_read_b128 v[{80+4*w}:{83+4*w}], v62 offset:{256*w}")
    e(f"""
s_mul_i32 s56, s7, 2304
s_lshl_b32 s57, s5, 8
s_add_u32 s56, s56, s57
s_add_u32 s56, s56, {WS_HP}
s_waitcnt lgkmcnt(0)""")
    for w in range(1, 8):
        e(f"v_pk_add_f32 v[80:81], v[80:81], v[{80+4*w}:{81+4*w}]\nv_pk_add_f32 v[82:83], v[82:83], v[{82+4*w}:{83+4*w}]")
    e(f"""
v_cvt_pk_bf16_f32 v84, v80, v81
v_cvt_pk_bf16_f32 v86, v82, v83
v_mov_b32 v85, s44
v_mov_b32 v87, s44
buffer_store_dwordx4 v[84:87], v63, s[40:43], s56 offen sc1
s_mov_b64 exec, -1
L_X_DONE:""")
    stamp(7)
    e(f"""
s_cmp_ge_u32 s6, 90
s_cbranch_scc1 L_RED
s_branch L_FIN""")

    e(f"""
L_Y:
; y = 2*(c*8 + (h&7)) + (h>>3)
s_and_b32 s6, s4, 7
s_lshl_b32 s7, s5, 3
s_add_u32 s6, s6, s7
s_lshl_b32 s6, s6, 1
s_lshr_b32 s7, s4, 3                    ; half
s_add_u32 s6, s6, s7                    ; y
v_and_b32 v1, 4, v0
v_cmp_eq_u32 vcc, 0, v1
v_mov_b32 v2, s30
v_mov_b32 v3, s31
v_mov_b32 v12, s28
v_mov_b32 v13, s29
v_cndmask_b32 v12, v2, v12, vcc
v_cndmask_b32 v13, v3, v13, vcc
v_mul_u32_u24 v1, 9216, v8
v_and_b32 v2, 3, v0
v_lshl_add_u32 v1, v2, 4, v1
s_mul_i32 s56, s3, {64*9216}
s_lshl_b32 s57, s6, 6
s_add_u32 s56, s56, s57
s_mul_i32 s57, s7, {4*8*9216}
s_add_u32 s57, s57, s56
v_add_u32 v2, s57, v1
v_add_co_u32 v14, vcc, v12, v2
v_addc_co_u32 v15, vcc, 0, v13, vcc
s_xor_b32 s58, s7, 1
s_mul_i32 s57, s58, {4*8*9216}
s_add_u32 s57, s57, s56
v_add_u32 v2, s57, v1
v_add_co_u32 v12, vcc, v12, v2
v_addc_co_u32 v13, vcc, 0, v13, vcc""")
    for sl in range(8):
        a = 14 if sl < 4 else 12
        e(f"global_load_dwordx4 v[{32+4*sl}:{35+4*sl}], v[{a}:{a+1}], off {gu_flags[0] if sl < 4 else gu_flags[1]}")
        if sl % 4 != 3:
            e(f"v_add_co_u32 v{a}, vcc, {8*9216}, v{a}\nv_addc_co_u32 v{a+1}, vcc, 0, v{a+1}, vcc")
    srd(8, 32, 4608*1152)
    e(f"""
v_mul_u32_u24 v10, 1152, v8
v_add_u32 v10, v10, v9
s_mul_i32 s56, s6, {32*1152}
s_lshl_b32 s57, s3, 7
s_add_u32 s56, s56, s57""")
    for t in range(4):
        e(f"buffer_load_dwordx4 v[{64+4*t}:{67+4*t}], v10, s[8:11], s56 offen nt\ns_add_u32 s56, s56, {8*1152}")
    srd(12, 16, 1152)
    e(f"""
v_and_b32 v1, 15, v0
v_lshrrev_b32 v2, 4, v0
v_lshl_add_u32 v3, v1, 2, v2            ; 4j+u
s_lshl_b32 s56, s3, 6
v_add_u32 v16, s56, v3                  ; col
v_lshlrev_b32 v17, 1, v16
buffer_load_ushort v18, v17, s[12:15], 0 offen
v_and_b32 v17, 1, v1
v_lshl_add_u32 v17, v17, 2, v2
v_lshlrev_b32 v17, 3, v17
v_lshrrev_b32 v19, 1, v1
v_add_u32 v17, v17, v19
v_add_u32 v17, s56, v17
v_lshlrev_b32 v17, 2, v17
v_add_u32 v17, {LHT}, v17
s_lshl_b32 s56, s3, 8
s_add_u32 s56, s56, {LHT}
v_lshl_add_u32 v19, v8, 5, s56
s_lshl_b32 s57, s7, 4
v_add_u32 v20, s57, v19
s_lshl_b32 s57, s58, 4
v_add_u32 v21, s57, v19
v_lshlrev_b32 v22, 5, v0
v_add_u32 v22, {LHT}, v22
v_lshlrev_b32 v23, 2, v0
v_add_u32 v23, {LHT+2048}, v23
v_mul_u32_u24 v24, 2304, v2
v_lshl_add_u32 v24, v1, 4, v24
v_mov_b32 v25, v24
v_cmp_gt_u32 s[46:47], 3, v2
v_mov_b32 v3, 0x7fffffff
v_cndmask_b32 v25, v3, v25, s[46:47]
s_lshl_b32 s56, s3, 8
s_add_u32 s56, s56, {WS_HP}
s_add_u32 s57, s56, {4*2304}
s_add_u32 s58, s56, {8*2304}
v_lshlrev_b32 v26, 5, v1
v_lshl_add_u32 v26, v2, 4, v26
s_lshl_b32 s59, s3, 8
s_add_u32 s59, s59, {LRR}
v_add_u32 v27, s59, v26
L_YG:
buffer_load_dwordx4 v[80:83], v24, s[40:43], s56 offen sc1
buffer_load_dwordx4 v[84:87], v24, s[40:43], s57 offen sc1
buffer_load_dwordx4 v[88:91], v25, s[40:43], s58 offen sc1
s_waitcnt vmcnt(0)
v_xor_b32 v92, s44, v81
v_xor_b32 v93, s44, v83
v_xor_b32 v94, s44, v85
v_xor_b32 v95, s44, v87
v_or3_b32 v92, v92, v93, v94
v_xor_b32 v93, s44, v89
v_xor_b32 v94, s44, v91
v_or_b32 v93, v93, v94
v_cndmask_b32 v93, 0, v93, s[46:47]
v_or3_b32 v92, v92, v93, v95
v_cmp_ne_u32 vcc, 0, v92""")
    spin_guard("L_YG", 62)
    stamp(6)
    for r, (reg, hi) in enumerate(((0, False), (0, True), (2, False), (2, True))):
        for k in range(3):
            src = 80 + 4*k + reg
            dst = 96 + r if k == 0 else 100
            if hi: e(f"v_and_b32 v{dst}, 0xffff0000, v{src}")
            else: e(f"v_lshlrev_b32 v{dst}, 16, v{src}")
            if k: e(f"v_add_f32 v{96+r}, v{96+r}, v100")
    e(f"""
v_permlane32_swap_b32 v96, v98
v_permlane32_swap_b32 v97, v99
v_add_f32 v96, v96, v98
v_add_f32 v97, v97, v99
v_permlane16_swap_b32 v96, v97
v_add_f32 v96, v96, v97""")
    rne(96, 96)
    e("v_lshlrev_b32 v18, 16, v18\nv_add_f32 v96, v96, v18")
    rne(96, 96)
    e(f"""
ds_write_b32 v17, v96
s_waitcnt lgkmcnt(0)
s_barrier                               ; BY1
ds_read_b128 v[80:83], v22
ds_read_b128 v[84:87], v22 offset:16
ds_read_b32 v88, v23
ds_read_b128 v[96:99], v20
ds_read_b128 v[100:103], v21
s_waitcnt lgkmcnt(2)
v_pk_add_f32 v[90:91], v[80:81], v[82:83]
v_pk_add_f32 v[92:93], v[84:85], v[86:87]
v_pk_add_f32 v[90:91], v[90:91], v[92:93]
v_add_f32 v90, v90, v91
v_add_f32 v90, v90, v88""")
    allreduce("v_add_f32", 90, 91)
    e(f"v_mul_f32 v90, {INV576:#x}, v90")
    e("v_sub_f32 v91, v88, v90\nv_mul_f32 v92, v91, v91")
    for i in range(8): e(f"v_sub_f32 v91, v{80+i}, v90\nv_fmac_f32 v92, v91, v91")
    allreduce("v_add_f32", 92, 91)
    e(f"v_mul_f32 v92, {INV576:#x}, v92")
    ln_tail(90, 92, 93, 94, 91)
    e("s_mov_b32 s60, 0x01000100\ns_mov_b32 s61, 0x03020302\ns_waitcnt lgkmcnt(0)")
    for i in range(4):
        a = 96 + 2*i
        e(f"""v_sub_f32 v{a}, v{a}, v93
v_sub_f32 v{a+1}, v{a+1}, v93
v_cvt_pk_bf16_f32 v88, v{a}, v{a+1}
v_lshlrev_b32 v89, 16, v88
v_and_b32 v90, 0xffff0000, v88
v_mul_f32 v89, v89, v94
v_mul_f32 v90, v90, v94
v_cvt_pk_bf16_f32 v88, v89, v90
v_perm_b32 v{a}, v88, v88, s60
v_perm_b32 v{a+1}, v88, v88, s61""")
    for sl in range(8):
        amask(104 + 4*(sl % 2), 96 + sl)
        c = "0" if sl == 0 else "v[112:115]"
        e(f"v_mfma_f32_16x16x32_bf16 v[112:115], v[{104+4*(sl%2)}:{107+4*(sl%2)}], v[{32+4*sl}:{35+4*sl}], {c}")
    half_reduce(112, 116)
    e(f"""
s_mov_b32 s56, 0x00ff00ff
s_mov_b32 s57, 0
s_mov_b64 exec, s[56:57]
ds_write_b128 v27, v[112:115]
s_mov_b64 exec, -1
v_lshlrev_b32 v1, 2, v0
v_add_u32 v1, {LRR}, v1
s_waitcnt lgkmcnt(0)
s_barrier                               ; BY2""")
    stamp(7)
    for w in range(9): e(f"ds_read_b32 v{80+w}, v1 offset:{256*w}")
    e(f"""
s_lshl_b32 s56, s3, 7
s_add_u32 s56, s56, {LAT}
v_and_b32 v2, 7, v0
v_lshlrev_b32 v2, 2, v2
v_add_u32 v2, v2, v8
v_lshl_add_u32 v2, v2, 2, s56
v_lshl_add_u32 v3, v8, 4, s56
s_waitcnt lgkmcnt(0)
v_add_f32 v80, v80, v81
v_add_f32 v82, v82, v83
v_add_f32 v84, v84, v85
v_add_f32 v86, v86, v87
v_add_f32 v80, v80, v82
v_add_f32 v84, v84, v86
v_add_f32 v80, v80, v88
v_add_f32 v80, v80, v84""")
    rne(80, 80)
    e(f"""
v_mov_b32 v81, v80
v_permlane32_swap_b32 v80, v81
v_mul_f32 v82, v80, v80
v_mul_f32 v82, 0x3d372713, v82
v_add_f32 v82, 1.0, v82
v_mul_f32 v82, v82, v80
v_mul_f32 v82, 0xc0135761, v82
v_exp_f32 v82, v82
v_add_f32 v82, 1.0, v82
v_rcp_f32 v82, v82
v_mul_f32 v82, v82, v80""")
    rne(82, 82)
    e(f"""
v_mul_f32 v82, v82, v81
v_cvt_pk_bf16_f32 v82, v82, v82
s_mov_b32 exec_lo, -1
s_mov_b32 exec_hi, 0
ds_write_b32 v2, v82
s_mov_b64 exec, -1
s_waitcnt lgkmcnt(0)
ds_read_b128 v[84:87], v3
v_and_b32 v1, 15, v0
v_lshrrev_b32 v2, 4, v0
v_and_b32 v3, 3, v1
v_lshlrev_b32 v3, 5, v3
v_lshl_add_u32 v3, v2, 4, v3
v_bfe_u32 v1, v1, 2, 1
v_mul_u32_u24 v1, 18432, v1
v_add_u32 v3, v3, v1
s_mul_i32 s56, s3, {2*18432}
s_lshl_b32 s57, s6, 7
s_add_u32 s56, s56, s57
s_add_u32 s56, s56, {WS_DP}
s_waitcnt lgkmcnt(0)""")
    for t in range(4):
        amask(104 + 4*(t % 2), 84 + t)
        c = "0" if t == 0 else "v[112:115]"
        e(f"v_mfma_f32_16x16x32_bf16 v[112:115], v[{104+4*(t%2)}:{107+4*(t%2)}], v[{64+4*t}:{67+4*t}], {c}")
    half_reduce(112, 116)
    e(f"""
v_cvt_pk_bf16_f32 v84, v112, v113
v_cvt_pk_bf16_f32 v86, v114, v115
v_mov_b32 v85, s44
v_mov_b32 v87, s44
s_mov_b32 s58, 0x00ff00ff
s_mov_b32 s59, 0
s_mov_b64 exec, s[58:59]
buffer_store_dwordx4 v[84:87], v3, s[40:43], s56 offen sc1
s_mov_b64 exec, -1""")
    stamp(8)
    e("s_branch L_FIN")

    e(f"""
L_RED:
s_cmp_lt_u32 s6, 90
s_cbranch_scc1 L_FIN
s_cmp_ge_u32 s6, 108
s_cbranch_scc1 L_FIN
s_sub_u32 s6, s6, 90                    ; rho
s_mov_b32 s62, {spin}
s_mul_i32 s56, s6, 18432
s_lshl_b32 s57, s3, 11
s_add_u32 s56, s56, s57
s_add_u32 s56, s56, {WS_DP}
s_add_u32 s57, s56, 1024
v_and_b32 v1, 7, v0
v_lshlrev_b32 v1, 4, v1
s_lshl_b32 s58, s3, 7
s_add_u32 s58, s58, {LRR}
v_add_u32 v27, s58, v1
s_cmp_eq_u32 s3, 0
s_cbranch_scc0 L_RG
; wave 0 additionally gathers h for its 32 columns: HP + rg*2304 + rho*128 + (l&7)*16 ; rg = 8k + (l>>3)""")
    srd(12, 16, 1152)
    e(f"""
s_lshl_b32 s58, s6, 6
v_and_b32 v2, 7, v0
v_lshlrev_b32 v2, 3, v2
v_add_u32 v2, s58, v2
buffer_load_dwordx2 v[18:19], v2, s[12:15], 0 offen
v_mul_u32_u24 v24, 2304, v8
v_add_u32 v24, v24, v1
v_cmp_gt_u32 s[46:47], 3, v8
v_mov_b32 v3, 0x7fffffff
v_cndmask_b32 v25, v3, v24, s[46:47]
s_lshl_b32 s58, s6, 7
s_add_u32 s58, s58, {WS_HP}
s_add_u32 s59, s58, {8*2304}
L_RH:
buffer_load_dwordx4 v[80:83], v24, s[40:43], s58 offen sc1
buffer_load_dwordx4 v[84:87], v25, s[40:43], s59 offen sc1
s_waitcnt vmcnt(0)
v_xor_b32 v92, s44, v81
v_xor_b32 v93, s44, v83
v_xor_b32 v94, s44, v85
v_xor_b32 v95, s44, v87
v_or_b32 v94, v94, v95
v_cndmask_b32 v94, 0, v94, s[46:47]
v_or3_b32 v92, v92, v93, v94
v_cmp_ne_u32 vcc, 0, v92""")
    spin_guard("L_RH", 62)
    def unpack_add(dst, srcs):
        for r, (reg, hi) in enumerate(((0, False), (0, True), (2, False), (2, True))):
            for k, s in enumerate(srcs):
                d = dst + r if k == 0 else 100
                if hi: e(f"v_and_b32 v{d}, 0xffff0000, v{s+reg}")
                else: e(f"v_lshlrev_b32 v{d}, 16, v{s+reg}")
                if k: e(f"v_add_f32 v{dst+r}, v{dst+r}, v100")
    def red8(d):
        for r in range(4): e(f"v_add_f32_dpp v{d+r}, v{d+r}, v{d+r} row_ror:8 row_mask:0xf bank_mask:0xf")
        for r in range(4): e(f"v_mov_b32 v{104+r}, v{d+r}")
        for r in range(4): e(f"v_permlane16_swap_b32 v{104+r}, v{d+r}")
        for r in range(4): e(f"v_add_f32 v{d+r}, v{d+r}, v{104+r}")
        for r in range(4): e(f"v_mov_b32 v{104+r}, v{d+r}")
        for r in range(4): e(f"v_permlane32_swap_b32 v{104+r}, v{d+r}")
        for r in range(4): e(f"v_add_f32 v{d+r}, v{d+r}, v{104+r}")
    unpack_add(28, (80, 84))
    red8(28)
    e("v_lshlrev_b32 v96, 16, v18\nv_and_b32 v97, 0xffff0000, v18\nv_lshlrev_b32 v98, 16, v19\nv_and_b32 v99, 0xffff0000, v19")
    for r in range(4):
        rne(28 + r, 28 + r)
        e(f"v_add_f32 v{28+r}, v{28+r}, v{96+r}")
        rne(28 + r, 28 + r)
    e(f"""
s_mov_b32 s62, {spin}
L_RG:
buffer_load_dwordx4 v[80:83], v11, s[40:43], s56 offen sc1
buffer_load_dwordx4 v[84:87], v11, s[40:43], s57 offen sc1
s_waitcnt vmcnt(0)
v_xor_b32 v92, s44, v81
v_xor_b32 v93, s44, v83
v_xor_b32 v94, s44, v85
v_xor_b32 v95, s44, v87
v_or3_b32 v92, v92, v93, v94
v_or_b32 v92, v92, v95
v_cmp_ne_u32 vcc, 0, v92""")
    spin_guard("L_RG", 62)
    stamp(8)
    unpack_add(96, (80, 84))
    red8(96)
    e(f"""
s_mov_b64 exec, 0xff
ds_write_b128 v27, v[96:99]
s_mov_b64 exec, -1
s_waitcnt lgkmcnt(0)
s_barrier                               ; BR1
s_cmp_eq_u32 s3, 0
s_cbranch_scc0 L_FIN
v_add_u32 v1, {LRR}, v1""")
    for w in range(9): e(f"ds_read_b128 v[{40+4*w}:{43+4*w}], v1 offset:{128*w}")
    srd(8, 34, 1152)
    e(f"""
s_lshl_b32 s58, s6, 6
v_and_b32 v2, 7, v0
v_lshlrev_b32 v2, 3, v2
v_add_u32 v2, s58, v2
s_waitcnt lgkmcnt(0)""")
    for w in range(1, 9):
        e(f"v_pk_add_f32 v[40:41], v[40:41], v[{40+4*w}:{41+4*w}]\nv_pk_add_f32 v[42:43], v[42:43], v[{42+4*w}:{43+4*w}]")
    for r in range(4):
        rne(40 + r, 40 + r)
        e(f"v_add_f32 v{40+r}, v{40+r}, v{28+r}")
    e(f"""
v_cvt_pk_bf16_f32 v40, v40, v41
v_cvt_pk_bf16_f32 v41, v42, v43
s_mov_b64 exec, 0xff
buffer_store_dwordx2 v[40:41], v2, s[8:11], 0 offen
s_cmp_eq_u32 s6, 0
s_cbranch_scc0 L_FIN0
s_add_u32 s45, s45, 1
v_mov_b32 v3, s45
v_mov_b32 v2, 0
s_mov_b64 exec, 1
buffer_store_dword v3, v2, s[40:43], 0 offen sc1
L_FIN0:
s_mov_b64 exec, -1
L_FIN:""")
    if diag:
        stamp(9)
        e(f"""
s_waitcnt lgkmcnt(0)
s_mul_i32 s56, s2, 9
s_add_u32 s56, s56, s3
s_lshl_b32 s56, s56, 6
s_add_u32 s56, s56, {WS_DIAG}
v_mov_b32 v2, 0
s_mov_b64 exec, 1""")
        srd(40, 38, WS_SIZE)
        for i in range(16):
            e(f"v_mov_b32 v3, s{64+2*i}\nbuffer_store_dword v3, v2, s[40:43], s56 offen offset:{4*i}")
    if padT:
        e(f"""
L_PAD:
s_memrealtime s[96:97]
s_waitcnt lgkmcnt(0)
s_sub_u32 s96, s96, s98
s_cmp_lt_u32 s96, {padT}
s_cbranch_scc1 L_PAD""")
    e("L_END:\ns_endpgm")
    body, nn = e.text()
    return body, nn

HEADER = open(os.path.join(os.path.dirname(os.path.abspath(__file__)), "header.txt")).read()

def full(**kw):
    body, nn = gen(**kw)
    s = HEADER.replace("@@LAUNCH@@", f"; @launch grid=(256,1,1) block=(576,1,1) lds={LDS_BYTES}")
    s += f""".amdgcn_target "amdgcn-amd-amdhsa--gfx950"
.text
.globl {NAME}
.p2align 8
.type {NAME},@function
{NAME}:
{body}.section .rodata,"a"
.p2align 6
.amdhsa_kernel {NAME}
  .amdhsa_next_free_vgpr 136
  .amdhsa_next_free_sgpr 102
  .amdhsa_accum_offset 136
  .amdhsa_group_segment_fixed_size 0
  .amdhsa_kernarg_size 96
  .amdhsa_user_sgpr_count 2
  .amdhsa_user_sgpr_kernarg_segment_ptr 1
  .amdhsa_system_sgpr_workgroup_id_x 1
  .amdhsa_float_denorm_mode_32 3
.end_amdhsa_kernel
"""
    return s, nn

if __name__ == "__main__":
    diag = "--diag" in sys.argv
    kw = {}
    for a in sys.argv[1:]:
        if a.startswith("--pad="): kw["padT"] = int(a[6:])
    out = [a for a in sys.argv[1:] if not a.startswith("--")]
    s, nn = full(diag=diag, **kw)
    open(out[0] if out else "out.s", "w").write(s)
    print("nops inserted:", nn, "lines:", s.count("\n"))
```
